```python
import torch

def _softmax(x, axis=-1):
    return torch.softmax(x, dim=axis)
def _gelu(x):
    return torch.nn.functional.gelu(x, approximate="tanh")
def _silu(x):
    return torch.nn.functional.silu(x)
def _sigmoid(x):
    return torch.sigmoid(x)
def _layernorm(x, axis=-1, eps=1e-5):
    m = x.mean(dim=axis, keepdim=True)
    v = x.var(dim=axis, keepdim=True, unbiased=False)
    return (x - m) / torch.sqrt(v + eps)
def _scatter_add(tgt, idx, src, axis=0):
    return tgt.clone().index_add_(axis, idx, src)
def _segment_sum(src, seg, n):
    out = torch.zeros((n,) + src.shape[1:], dtype=src.dtype)
    return out.index_add_(0, seg, src)
def _pad(x, pw):
    flat = tuple(v for pair in reversed(pw) for v in pair)
    return torch.nn.functional.pad(x, flat)

kernel_name = 'parallel_sum__mha_block__dense_activation_relu__prompt'

def setup_inputs():

    _w = (lambda a: (lambda t: t.to(torch.bfloat16) if t.is_floating_point() else t)(torch.as_tensor(a)))
    def _A_setup():
        B, S, D, H = 1, 2048, 640, 32
        return {
            "x": _w((lambda *s: torch.randn(*s, dtype=torch.bfloat16) * 0.05)(B, S, D)),
            "wqkv": _w((lambda *s: torch.randn(*s, dtype=torch.bfloat16) * 0.2)(D, 3 * D)),
            "wo": _w((lambda *s: torch.randn(*s, dtype=torch.bfloat16) * 0.1)(D, D)),
        }
    _A_in = _A_setup()

    def _B_setup():
        B, S, D, Dff = 1, 2048, 640, 1728
        return {
            "x": _w((lambda *s: torch.randn(*s, dtype=torch.bfloat16) * 0.05)(B, S, D)),
            "w1": _w((lambda *s: torch.randn(*s, dtype=torch.bfloat16) * 0.2)(D, Dff)),
            "w2": _w((lambda *s: torch.randn(*s, dtype=torch.bfloat16) * 0.2)(Dff, D)),
        }
    _B_in = _B_setup()

    return {
        "A_x": _A_in["x"],
        "A_wqkv": _A_in["wqkv"],
        "A_wo": _A_in["wo"],
        "B_x": _B_in["x"],
        "B_w1": _B_in["w1"],
        "B_w2": _B_in["w2"],
    }

def reference(A_x, A_wqkv, A_wo, B_x, B_w1, B_w2):
    def _A_ref(x, wqkv, wo):
        B, S, D = x.shape
        H = 32
        Dh = D // H
        qkv = (lambda x, *d: x.permute(*d))((x @ wqkv).reshape(B, S, 3, H, Dh), 2, 0, 3, 1, 4)
        q, k, v = qkv[0], qkv[1], qkv[2]
        scores = torch.einsum("bhqd,bhkd->bhqk", q, k) * (Dh ** -0.5)
        p = _softmax(scores, axis=-1)
        o = torch.einsum("bhqk,bhkd->bhqd", p, v)
        return (lambda x, *d: x.permute(*d))(o, 0, 2, 1, 3).reshape(B, S, D) @ wo

    def _B_ref(x, w1, w2):
        h = torch.einsum("bsd,df->bsf", x, w1)
        zero = torch.zeros_like(h)
        h = torch.maximum(h, zero)
        return torch.einsum("bsf,fd->bsd", h, w2)

    x = A_x
    xn = _layernorm(x, axis=-1)
    return x + _A_ref(xn, A_wqkv, A_wo) + _B_ref(xn, B_w1, B_w2)
```

```python
import re


def v(i, n=1):
    return f'v{i}' if n == 1 else f'v[{i}:{i + n - 1}]'


def s(i, n=1):
    return f's{i}' if n == 1 else f's[{i}:{i + n - 1}]'


def is_lit(t):
    try:
        return not (-16 <= int(t, 0) <= 64)
    except ValueError:
        return False


class Asm:
    def __init__(self):
        self.lines = []
        self.nlab = 0

    def __call__(self, *ls):
        for l in ls:
            if isinstance(l, (list, tuple)):
                self(*l)
            else:
                for x in l.split('\n'):
                    x = x.strip()
                    if x:
                        m = re.match(r's_cselect_b32 (\S+), (\S+), (\S+)$', x)
                        if m and is_lit(m.group(2)) and is_lit(m.group(3)):
                            self.lines.append(f's_mov_b32 {m.group(1)}, {m.group(3)}')
                            x = f's_cselect_b32 {m.group(1)}, {m.group(2)}, {m.group(1)}'
                        self.lines.append(x)

    def lab(self, base='L'):
        self.nlab += 1
        return f'{base}_{self.nlab}'

    def text(self):
        out = []
        for l in self.lines:
            out.append(l if (l.endswith(':') or l.startswith('.') or l.startswith(';')) else '    ' + l)
        return '\n'.join(out) + '\n'


def weave(base, extras):
    out = list(extras.get(-1, []))
    for i, x in enumerate(base):
        out.append(x)
        out += extras.get(i, [])
    return out


def spread(base, fill, start=0, end=None):
    end = len(base) if end is None else end
    n = end - start
    ex = {}
    for j, f in enumerate(fill):
        p = start + (j * n) // max(1, len(fill))
        ex.setdefault(p, []).append(f)
    return weave(base, ex)


REG = re.compile(r'(?<![\w.])(-|abs\()?\|?([vsa])(?:(\d+)|\[(\d+):(\d+)\])')
TRANS = ('v_exp_', 'v_log_', 'v_rcp_', 'v_rsq_', 'v_sqrt_', 'v_sin_', 'v_cos_')
PASSES = {'32x32x16': 8, '32x32x8': 8, '16x16x32': 4, '4x4x4': 2, '32x32x32': 8}


def regs_of(tok):
    r = set()
    tok = tok.strip()
    if tok in ('vcc', 'vcc_lo', 'vcc_hi'):
        return {('s', 'vcc')}
    if tok == 'exec':
        return {('s', 'exec')}
    if tok == 'm0':
        return {('s', 'm0')}
    for m in REG.finditer(tok):
        k = m.group(2)
        if m.group(3) is not None:
            r.add((k, int(m.group(3))))
        else:
            r |= {(k, i) for i in range(int(m.group(4)), int(m.group(5)) + 1)}
    return r


class Ins:
    def __init__(self, text):
        self.text = text
        t = text.split(';')[0].strip()
        p = t.split(None, 1)
        self.op = p[0]
        rest = p[1] if len(p) > 1 else ''
        ops = [x.strip() for x in re.split(r',(?![^\[]*\])', rest)] if rest else []
        if ops:
            last = ops[-1].split()
            self.mods = last[1:]
            ops[-1] = last[0] if last else ''
        else:
            self.mods = []
        self.ops = ops
        op = self.op
        self.mfma = op.startswith('v_mfma') or op.startswith('v_smfmac')
        self.valu = op.startswith('v_') and not self.mfma
        self.trans = op.startswith(TRANS)
        self.vmem = op.startswith('buffer_') or op.startswith('global_')
        self.ds = op.startswith('ds_')
        self.salu = op.startswith('s_')
        self.passes = None
        W, R = set(), set()
        self.A = self.B = self.C = set()
        if self.mfma:
            for k, n in PASSES.items():
                if k in op:
                    self.passes = n
            W = regs_of(ops[0])
            self.A, self.B = regs_of(ops[1]), regs_of(ops[2])
            if op.startswith('v_smfmac'):
                self.C = set(W)
                self.B = self.B | regs_of(ops[3])
            else:
                self.C = regs_of(ops[3])
            R = self.A | self.B | self.C
        elif self.valu:
            nd = 1
            if op.startswith(('v_add_co', 'v_sub_co', 'v_addc_co', 'v_subb_co', 'v_div_scale', 'v_mad_u64')):
                nd = 2
            if op.startswith('v_permlane32_swap') or op.startswith('v_permlane16_swap') or op.startswith('v_swap'):
                W = regs_of(ops[0]) | regs_of(ops[1])
                R = set(W)
            else:
                for o in ops[:nd]:
                    W |= regs_of(o)
                for o in ops[nd:]:
                    R |= regs_of(o)
                if op.startswith(('v_fmac', 'v_pk_fmac', 'v_dot2c')) or 'UNUSED_PRESERVE' in text or op.startswith('v_writelane'):
                    R |= regs_of(ops[0])
            if op.startswith('v_cmpx'):
                W |= {('s', 'exec')}
        elif self.vmem:
            lds = 'lds' in self.mods
            if 'store' in op or ('atomic' in op):
                for o in ops:
                    R |= regs_of(o)
                self.sdata = regs_of(ops[0])
                if 'atomic' in op and 'sc0' in self.mods:
                    W = regs_of(ops[0])
            elif lds:
                for o in ops:
                    R |= regs_of(o)
                R |= {('s', 'm0')}
            else:
                W = regs_of(ops[0])
                for o in ops[1:]:
                    R |= regs_of(o)
        elif self.ds:
            if op.startswith('ds_read') or '_rtn' in op or 'permute' in op or 'swizzle' in op:
                W = regs_of(ops[0])
                for o in ops[1:]:
                    R |= regs_of(o)
            else:
                for o in ops:
                    R |= regs_of(o)
        elif self.salu:
            if op.startswith(('s_cmp', 's_bitcmp', 's_waitcnt', 's_nop', 's_barrier', 's_branch', 's_cbranch', 's_setprio', 's_sleep', 's_endpgm', 's_setpc')):
                for o in ops:
                    R |= regs_of(o)
            else:
                W = regs_of(ops[0]) if ops else set()
                for o in ops[1:]:
                    R |= regs_of(o)
                if 'saveexec' in op:
                    W |= {('s', 'exec')}
        self.W, self.R = W, R
        self.states = 1
        if op == 's_nop':
            self.states = int(ops[0], 0) + 1
        self.clk = 4 * self.states
        if self.trans:
            self.clk = 8


def need(p, c):
    out = []
    vW = {r for r in p.W if r[0] in 'va'}
    sW = {r for r in p.W if r[0] == 's'}
    if p.valu:
        if c.mfma and vW & c.R:
            out.append((2, 'valu->mfma'))
        if p.trans and c.valu and not c.trans and vW & c.R:
            out.append((1, 'trans->valu'))
        if c.op.startswith(('v_readfirstlane', 'v_readlane')) and vW & c.R:
            out.append((1, 'valu->readlane'))
        if c.op.startswith('v_permlane') and vW & c.R:
            out.append((2, 'valu->permlane'))
        if 'dpp' in c.text or 'row_' in c.text or 'quad_perm' in c.text:
            if vW & c.R:
                out.append((2, 'valu->dpp'))
        if sW and c.vmem and sW & c.R:
            out.append((5, 'valu sgpr->vmem'))
        if sW and c.valu and sW & c.R:
            out.append((2, 'valu sgpr->valu'))
        if sW and c.valu and c.op.startswith('v_cndmask') and len(c.ops) == 3 and ('s', 'vcc') in sW:
            out.append((2, 'vcc->cndmask'))
        if ('s', 'exec') in sW and c.mfma:
            out.append((4, 'cmpx->mfma'))
        if sW and c.salu and sW & c.R:
            out.append((1, 'valu sgpr->salu (pad)'))
    if p.salu and ('s', 'm0') in p.W and c.vmem and 'lds' in c.mods:
        out.append((1, 'm0->dma'))
    if p.vmem and hasattr(p, 'sdata') and len(p.sdata) >= 3 and c.valu and p.sdata & c.W:
        out.append((2, 'store data WAR'))
    if p.mfma:
        i = {2: 0, 4: 1, 8: 2, 16: 3}[p.passes]
        if c.mfma:
            if vW & (c.A | c.B):
                out.append(((5, 8, 12, 20)[i], 'mfma->mfma AB'))
            if vW & c.C:
                if vW == c.C and c.passes == p.passes:
                    out.append(((2, 0, 0, 0)[i], 'mfma chain'))
                else:
                    out.append(((4, 6, 10, 18)[i], 'mfma->C overlap'))
            elif vW & c.W:
                out.append(((4, 6, 10, 18)[i], 'mfma WAW overlap'))
        else:
            if vW & (c.R | c.W) and (c.valu or c.vmem or c.ds):
                out.append(((5, 8, 12, 20)[i], 'mfma->valu/mem'))
            if c.valu and p.C & c.W:
                out.append(((1, 3, 7, 15)[i], 'mfma C WAR'))
    return out


def check(lines, maxd=22, relax_clk=True):
    ins, labels = [], {}
    for l in lines:
        if l.endswith(':'):
            labels[l[:-1]] = len(ins)
        elif l.startswith('.') or l.startswith(';'):
            continue
        else:
            ins.append(Ins(l))
    probs = []

    def succ(i):
        x = ins[i]
        if x.op == 's_endpgm':
            return []
        if x.op == 's_branch':
            return [labels[x.ops[0]]]
        if x.op.startswith('s_cbranch'):
            return [labels[x.ops[0]], i + 1]
        return [i + 1] if i + 1 < len(ins) else []

    for i, p in enumerate(ins):
        if not (p.W or p.mfma or hasattr(p, 'sdata')):
            continue
        seen = {}
        stack = [(j, 0, 0) for j in succ(i)]
        while stack:
            j, d, clk = stack.pop()
            if d >= maxd or j >= len(ins):
                continue
            if j in seen and seen[j] <= d:
                continue
            seen[j] = d
            c = ins[j]
            for n, why in need(p, c):
                if d < n:
                    soft = relax_clk and why in ('mfma->valu/mem',) and clk >= 4 * n + 8
                    probs.append((soft, f'{why}: need {n} have {d} (clk {clk}): [{i}] {p.text}  ->  [{j}] {c.text}'))
            for k in succ(j):
                stack.append((k, d + c.states, clk + c.clk))
    return probs
```

```python
import sys
import math
from asmlib import Asm, v, s, weave, spread, check

KNAME = 'parallel_sum__mha_block__dense_activation_relu__prompt_kernel'

REC = 2688
KV_OFF = 0
H_OFF = 0x600000
O_OFF = 0xD00000
FL_OFF = 0x1000000
FKV = FL_OFF
FH = FL_OFF + 0x4000
FO = FL_OFF + 0x6000
EP_OFF = FL_OFF + 0x8000
ST_OFF = FL_OFF + 0x10000
WS_SIZE = 0x1100000
OOB = 0x80000000

SLOT = 49152
WIMG_A = 32768
WIMG_B = 41984
STAT = 147456
L_SSQ = STAT
L_SUM = STAT + 1024
L_CS = STAT + 2048
L_M = STAT + 2560
L_ONES = STAT + 3584
L_CNT = STAT + 3840
L_JUNK = STAT + 3904
L_Q = STAT + 4096
L_QR = L_Q + 8192
LDS_TOTAL = 163840
RING = 25600
L_OACC = 102400
L_YACC = 126976
L_VSCR = 0

CSCALE = (20 ** -0.5) * math.log2(math.e)
DELTA = 72.0


def f2u(x):
    import struct
    return struct.unpack('<I', struct.pack('<f', x))[0]


sX, sWA, sWB, sWS, sOUT, sW2 = 24, 28, 32, 36, 40, 44
sW, sH, sB, sKQ = 48, 49, 50, 51
sSIG, sCNT, sMSL, sXB, sSTA, sSTB = 52, 53, 54, 55, 56, 57
sT0, sT1, sT2, sT3, sT4, sT5 = 58, 59, 60, 61, 62, 63
sTAG = 64
sHI = 66
sRSL, sDLT = 67, 68
sM0X, sM0W = 69, 70
sMSK = 72
sMSK2 = 74
sBAR = 76
sMODE, sPUB = 77, 78
sBLK, sKC, sKN, sKB = 79, 80, 81, 82
sTO = 83
sDEL = 84
sHS, sHE = 85, 86
sDS = 87
sG0 = 88
sST = 90

vL = 1
O_ = lambda t: 2 + 12 * t
KV_ = lambda st: 102 + 14 * st
ACC = lambda tu, u: 130 + 32 * tu + 16 * u
FR = lambda st: 194 + 16 * st
Q_ = lambda t: 130 + 6 * t
S_ = lambda p: 178 + 16 * p
vAX, vAW0, vAW1 = 226, 230, 234
vDX, vDW = 238, 242
vQ0, vQ1 = 244, 245
vT = 246
vMSKW = 254
vE = 255
vCS = lambda u: 102 + 4 * u
vONE = 110


class Gen:
    def __init__(self, stamps=False, stop=None, force_fb=False):
        self.a = Asm()
        self.stamps = stamps
        self.stop = stop
        self.force_fb = force_fb
        self.nst = 0

    def stamp(self, idx):
        if not self.stamps:
            return
        a = self.a
        a(f's_memtime s[{sT4}:{sT5}]', 's_waitcnt lgkmcnt(0)', f's_mov_b32 s{sST + idx}, s{sT4}')

    def dump_stamps(self):
        if not self.stamps:
            return
        a = self.a
        a(f's_lshl_b32 s{sT0}, s2, 3', f's_add_u32 s{sT0}, s{sT0}, s{sW}', f's_lshl_b32 s{sT0}, s{sT0}, 6',
          f's_add_u32 s{sT0}, s{sT0}, {ST_OFF}', 's_mov_b64 exec, 1', f'v_mov_b32 v{vT}, 0')
        a(f's_memrealtime s[{sT4}:{sT5}]', 's_waitcnt lgkmcnt(0)', f's_mov_b32 s{sST + 11}, s{sT4}')
        for i in range(12):
            a(f'v_mov_b32 v{vT + 1}, s{sST + i}', f'buffer_store_dword v{vT + 1}, v{vT}, s[{sWS}:{sWS + 3}], s{sT0} offen offset:{4 * i}')
        a('s_waitcnt vmcnt(0)')

    def srd(self, d, p, n):
        self.a(f's_mov_b32 s{d}, s{p}', f's_mov_b32 s{d + 1}, s{p + 1}', f's_mov_b32 s{d + 2}, {n}', f's_mov_b32 s{d + 3}, 0x20000')

    def softbar(self, off, vt):
        a = self.a
        lp, dn = a.lab('SB'), a.lab('SBD')
        a(f's_add_u32 s{sBAR}, s{sBAR}, 4', 's_mov_b64 exec, 1', f'v_mov_b32 v{vt}, {L_CNT + off}', f'v_mov_b32 v{vt + 1}, 1',
          f'ds_add_u32 v{vt}, v{vt + 1}', f's_mov_b32 s{sTO}, 0x400000')
        a(f'{lp}:', f'ds_read_b32 v{vt + 1}, v{vt}', 's_waitcnt lgkmcnt(0)', f'v_readfirstlane_b32 s{sT0}, v{vt + 1}', 's_nop 0',
          f's_cmp_ge_u32 s{sT0}, s{sBAR}', f's_cbranch_scc1 {dn}',
          f's_sub_u32 s{sTO}, s{sTO}, 1', f's_cmp_eq_u32 s{sTO}, 0', 's_cbranch_scc1 L_END', f's_branch {lp}')
        a(f'{dn}:', 's_mov_b64 exec, -1')

    def poll(self, vaddr, vd, soff, want):
        a = self.a
        lp, dn = a.lab('PL'), a.lab('PLD')
        a(f's_mov_b32 s{sTO}, 0x20000')
        a(f'{lp}:', f'buffer_load_dwordx2 {v(vd, 2)}, v{vaddr}, s[{sWS}:{sWS + 3}], {soff} offen sc1', 's_waitcnt vmcnt(0)',
          f'v_cmp_eq_u64 vcc, s[{sTAG}:{sTAG + 1}], {v(vd, 2)}', 's_nop 1',
          f's_and_b32 s{sT0}, vcc_lo, {want}', f's_cmp_eq_u32 s{sT0}, {want}', f's_cbranch_scc1 {dn}',
          f's_sub_u32 s{sTO}, s{sTO}, 1', f's_cmp_eq_u32 s{sTO}, 0', 's_cbranch_scc1 L_END', 's_sleep 2', f's_branch {lp}')
        a(f'{dn}:')

    def post(self, soff, vt):
        self.a('s_mov_b64 exec, 1', f'v_mov_b32 v{vt}, s{sTAG}', f'v_mov_b32 v{vt + 1}, s{sTAG + 1}', f'v_mov_b32 v{vt + 2}, 0',
               f'buffer_store_dwordx2 {v(vt, 2)}, v{vt + 2}, s[{sWS}:{sWS + 3}], s{soff} offen sc1', 's_mov_b64 exec, -1')

    def dma_group(self):
        x = [f'buffer_load_dwordx4 v{vDX + i}, s[{sX}:{sX + 3}], s{sT0} offen offset:{1024 * i} lds' for i in range(4)]
        return [
            [f's_lshl_b32 s{sT0}, s{sSIG}, 7', f's_add_u32 m0, s{sMSL}, s{sM0X}', f's_add_u32 s{sT0}, s{sT0}, s{sXB}', x[0]],
            [x[1]], [x[2]], [x[3]],
            [f's_add_u32 m0, s{sMSL}, s{sM0W}', f's_mul_i32 s{sT1}, s{sSIG}, s{sSTA}',
             f'buffer_load_dwordx4 v{vDW}, s[{sWA}:{sWA + 3}], s{sT1} offen lds'],
            [f's_mul_i32 s{sT2}, s{sSIG}, s{sSTB}', f'buffer_load_dwordx4 v{vDW + 1}, s[{sWB}:{sWB + 3}], s{sT2} offen offset:1024 lds'],
            [f's_add_u32 s{sSIG}, s{sSIG}, 1', f's_cmp_eq_u32 s{sSIG}, 10', f's_cselect_b32 s{sSIG}, 0, s{sSIG}',
             f's_add_u32 s{sMSL}, s{sMSL}, {SLOT}', f's_cmp_eq_u32 s{sMSL}, {3 * SLOT}', f's_cselect_b32 s{sMSL}, 0, s{sMSL}'],
        ]

    def prologue(self):
        a = self.a
        T = vT
        a('s_cmp_ge_u32 s2, 0x100', 's_cbranch_scc1 L_END')
        a('s_load_dwordx8 s[4:11], s[0:1], 0', 's_load_dwordx4 s[12:15], s[0:1], 32', 's_load_dwordx4 s[16:19], s[0:1], 48',
          's_load_dwordx2 s[20:21], s[0:1], 64')
        if self.stamps:
            a(f's_memtime s[{sST}:{sST + 1}]', f's_memrealtime s[{sST + 2}:{sST + 3}]')
        a(f'v_lshrrev_b32 v{T}, 6, v0', f'v_and_b32 v{vL}, 63, v0')
        a(f's_and_b32 s{sT0}, s2, 7', f's_lshr_b32 s{sT1}, s2, 3')
        a(f'v_readfirstlane_b32 s{sW}, v{T}')
        a(f's_lshr_b32 s{sH}, s{sT0}, 1', f's_lshl_b32 s{sH}, s{sH}, 3', f's_and_b32 s{sT2}, s{sT1}, 7', f's_or_b32 s{sH}, s{sH}, s{sT2}')
        a(f's_and_b32 s{sB}, s{sT0}, 1', f's_lshl_b32 s{sB}, s{sB}, 2', f's_lshr_b32 s{sT1}, s{sT1}, 3', f's_or_b32 s{sB}, s{sB}, s{sT1}')
        a(f's_mul_i32 s{sT1}, s{sT1}, 5', f's_add_u32 s{sT1}, s{sT1}, 1', f's_lshr_b32 s{sT1}, s{sT1}, 1', f's_add_u32 s{sSIG}, s{sT1}, s{sT2}',
          f's_cmp_ge_u32 s{sSIG}, 10', f's_cselect_b32 s{sT1}, 10, 0', f's_sub_u32 s{sSIG}, s{sSIG}, s{sT1}')
        a(f's_and_b32 s{sKQ}, s{sW}, 3')
        a(f'v_lshrrev_b32 v{T}, 3, v{vL}', f'v_mul_u32_u24 v{T}, 1280, v{T}',
          f'v_and_b32 v{T + 1}, 7, v{vL}', f'v_lshrrev_b32 v{T + 2}, 4, v{vL}', f'v_xor_b32 v{T + 1}, v{T + 1}, v{T + 2}',
          f'v_lshlrev_b32 v{T + 1}, 4, v{T + 1}', f'v_xor_b32 v{T + 2}, 64, v{T + 1}',
          f'v_add_u32 v{vDX}, v{T}, v{T + 1}', f'v_add_u32 v{T + 2}, v{T}, v{T + 2}',
          f'v_add_u32 v{vDX + 1}, 9216, v{T + 2}', f'v_add_u32 v{vDX + 2}, 18432, v{vDX}', f'v_add_u32 v{vDX + 3}, 27648, v{T + 2}')
        a(f's_lshl_b32 s{sXB}, s{sB}, 3', f's_add_u32 s{sXB}, s{sXB}, s{sW}', f's_mul_i32 s{sXB}, s{sXB}, {32 * 1280}')
        a(f's_lshl_b32 s{sM0X}, s{sW}, 12', f's_lshl_b32 s{sM0W}, s{sW}, 11', f's_add_u32 s{sM0W}, s{sM0W}, {WIMG_A}', f's_mov_b32 s{sMSL}, 0')
        a(f's_lshr_b32 s{sG0}, s{sH}, 2', f's_mul_i32 s{sG0}, s{sG0}, 27', f's_and_b32 s{sT0}, s{sH}, 3', f's_mul_i32 s{sT1}, s{sT0}, 7',
          f's_add_u32 s{sG0}, s{sG0}, s{sT1}')
        tblA_sec = sum(x << (2 * i) for i, x in enumerate([0, 0, 1, 1, 0, 1, 2, 2, 2]))
        tblA_off = sum(x << (3 * i) for i, x in enumerate([0, 2, 0, 2, 4, 4, 0, 2, 3]))
        tblB7 = sum((2 * x) << (4 * i) for i, x in enumerate([0, 1, 2, 3, 4, 5, 6]))
        tblB6 = sum((2 * x) << (4 * i) for i, x in enumerate([0, 1, 2, 3, 4, 5, 5]))
        a(f's_cmp_eq_u32 s{sT0}, 3', f's_cselect_b32 s{sMSK}, {tblB6}, {tblB7}')
        a(f's_mul_i32 s{sMSK + 1}, s{sH}, 40', f's_lshl_b32 s{sMSK2}, s{sG0}, 4')
        for e in range(2):
            st = sSTA + e
            a(f's_lshl_b32 s{sT0}, s{sW}, 1', f's_add_u32 s{sT0}, s{sT0}, {e}', f's_cmp_lt_u32 s{sT0}, 9',
              f's_cselect_b32 s{sT1}, 0, 9', f's_cselect_b32 s{sT2}, 7282, 9363', f's_cselect_b32 s{sT3}, 9, 7',
              f's_cselect_b32 s{sT4}, {tblA_sec}, 0', f's_cselect_b32 s{sT5}, {tblA_off}, s{sMSK}',
              f's_cselect_b32 s{st}, 3840, 3456', f's_cselect_b32 s{sDLT}, 3, 4', f's_cselect_b32 s{sRSL}, s{sMSK + 1}, s{sMSK2}',
              f's_sub_u32 s{sT0}, s{sT0}, s{sT1}', f's_lshl_b32 s{sT0}, s{sT0}, 6')
            a(f'v_add_u32 v{T}, s{sT0}, v{vL}',
              f'v_mul_u32_u24 v{T + 1}, s{sT2}, v{T}', f'v_lshrrev_b32 v{T + 1}, 16, v{T + 1}',
              f'v_mul_u32_u24 v{T + 2}, s{sT3}, v{T + 1}', f'v_sub_u32 v{T}, v{T}, v{T + 2}',
              f'v_and_b32 v{T + 2}, 3, v{T + 1}', f'v_bfe_u32 v{T + 3}, v{T + 1}, 2, 2', f'v_and_b32 v{T + 1}, 0x30, v{T + 1}',
              f'v_lshl_add_u32 v{T + 1}, v{T + 2}, 2, v{T + 1}', f'v_add_u32 v{T + 1}, v{T + 1}, v{T + 3}',
              f'v_mul_u32_u24 v{T + 1}, s{st}, v{T + 1}',
              f'v_lshlrev_b32 v{T + 2}, 1, v{T}', f'v_lshrrev_b32 v{T + 2}, v{T + 2}, s{sT4}', f'v_and_b32 v{T + 2}, 3, v{T + 2}',
              f'v_mul_u32_u24 v{T + 2}, 1280, v{T + 2}',
              f'v_mul_u32_u24 v{T}, s{sDLT}, v{T}', f'v_lshrrev_b32 v{T}, v{T}, s{sT5}', f'v_bfe_u32 v{T}, v{T}, 0, s{sDLT}',
              f'v_lshl_add_u32 v{T}, v{T}, 3, v{T + 1}', f'v_add3_u32 v{vDW + e}, v{T}, v{T + 2}, s{sRSL}')
            a(f's_lshl_b32 s{st}, s{st}, 6')
        a('s_waitcnt lgkmcnt(0)')
        self.srd(sX, 4, 2621440)
        a(f's_cmp_lt_u32 s{sW}, 5', f's_cselect_b32 s{sWA}, s6, s12', f's_cselect_b32 s{sWA + 1}, s7, s13',
          f's_cselect_b32 s{sWA + 2}, {640 * 3840}, {640 * 3456}', f's_mov_b32 s{sWA + 3}, 0x20000')
        a(f's_cmp_lt_u32 s{sW}, 4', f's_cselect_b32 s{sWB}, s6, s12', f's_cselect_b32 s{sWB + 1}, s7, s13',
          f's_cselect_b32 s{sWB + 2}, {640 * 3840 + 1024}, {640 * 3456 + 1024}', f's_mov_b32 s{sWB + 3}, 0x20000',
          f's_sub_u32 s{sWB}, s{sWB}, 1024', f's_subb_u32 s{sWB + 1}, s{sWB + 1}, 0')
        self.srd(sWS, 20, WS_SIZE)
        a(self.dma_group())
        a(self.dma_group())
        a(f'v_mov_b32 v{T}, {EP_OFF}', f'buffer_load_dword v{vE}, v{T}, s[{sWS}:{sWS + 3}], 0 offen sc1')
        self.srd(sOUT, 16, 2621440)
        self.srd(sW2, 14, 1728 * 1280)
        a(f's_mov_b32 s{sHI}, 0xffff0000', f's_mov_b32 s{sRSL}, 0', f's_mov_b32 s{sCNT}, 10', f's_mov_b32 s{sBAR}, 0',
          f's_mov_b32 s{sMODE}, 0', f's_mov_b32 s{sPUB}, 0', f's_mov_b32 s{sDEL}, {f2u(DELTA)}')
        a(f'v_lshlrev_b32 v{T}, 3, v0', f'v_mov_b32 v{T + 2}, 0', f'v_mov_b32 v{T + 4}, 0xff800000', f'v_mov_b32 v{T + 5}, 0x3f803f80',
          f'v_cmp_le_u32 vcc, {L_M - STAT}, v{T}', 's_nop 1', f'v_cndmask_b32 v{T + 2}, v{T + 2}, v{T + 4}, vcc',
          f'v_cmp_le_u32 vcc, {L_ONES - STAT}, v{T}', 's_nop 1', f'v_cndmask_b32 v{T + 2}, v{T + 2}, v{T + 5}, vcc',
          f'v_cmp_gt_u32 vcc, {L_CNT - STAT}, v{T}', 's_nop 1', f'v_cndmask_b32 v{T + 2}, 0, v{T + 2}, vcc',
          f'v_add_u32 v{T}, {STAT}, v{T}', f'v_mov_b32 v{T + 3}, v{T + 2}', f'ds_write_b64 v{T}, {v(T + 2, 2)}')
        a(f'v_and_b32 v{T}, 31, v{vL}', f'v_lshrrev_b32 v{T + 1}, 5, v{vL}', f'v_bfe_u32 v{T + 2}, v{vL}, 1, 3',
          f'v_xor_b32 v{T + 1}, v{T + 1}, v{T + 2}', f'v_lshlrev_b32 v{T + 1}, 4, v{T + 1}', f'v_lshl_add_u32 v{T}, v{T}, 7, v{T + 1}',
          f's_lshl_b32 s{sT0}, s{sKQ}, 13', f'v_add_u32 v{T}, s{sT0}, v{T}')
        for t in range(4):
            a(f's_add_u32 s{sT0}, s{sKQ}, {t}', f's_and_b32 s{sT0}, s{sT0}, 3', f's_lshl_b32 s{sT0}, s{sT0}, 5', f'v_xor_b32 v{vAX + t}, s{sT0}, v{T}')
        for r in list(range(ACC(0, 0), ACC(0, 0) + 64)) + list(range(FR(1), FR(1) + 16)) + list(range(vCS(0), vCS(0) + 8)) + [vQ0, vQ1]:
            a(f'v_mov_b32 v{r}, 0')
        a(f'v_mov_b32 v{vONE}, 0x3f803f80', f'v_mov_b32 v{vONE + 1}, 0x3f803f80')
        a(f'v_lshrrev_b32 v{T}, 5, v{vL}', f'v_bfe_u32 v{T + 1}, v{vL}, 2, 2', f'v_lshlrev_b32 v{T}, 1, v{T}', f'v_lshl_add_u32 v{T}, v{T + 1}, 2, v{T}',
          f'v_bfe_u32 v{T + 1}, v{vL}, 4, 1', f'v_and_b32 v{T + 2}, 3, v{vL}', f'v_lshl_add_u32 v{T + 1}, v{T + 1}, 2, v{T + 2}',
          f'v_lshlrev_b32 v{T + 1}, 2, v{T + 1}')
        a(f's_cmp_ge_u32 s{sW}, 4', 's_cbranch_scc1 L_B')

    def w_addr(self, typ):
        a = self.a
        T = vT
        pitch, img = (144, WIMG_A) if typ == 'a' else (112, WIMG_B)
        t0, t1 = (0x76543210, 0x39765240) if typ == 'a' else (0x75643120, 0x00543120)
        a(f'v_mul_u32_u24 v{T}, {pitch}, v{T}', f's_mov_b32 s{sT0}, {t0}', f's_mov_b32 s{sT1}, {t1}',
          f'v_lshrrev_b32 v{T + 2}, v{T + 1}, s{sT0}', f'v_and_b32 v{T + 2}, 15, v{T + 2}', f'v_lshl_add_u32 v{T + 2}, v{T + 2}, 3, v{T}',
          f'v_lshrrev_b32 v{T + 3}, v{T + 1}, s{sT1}', f'v_and_b32 v{T + 3}, 15, v{T + 3}', f'v_lshl_add_u32 v{T + 3}, v{T + 3}, 3, v{T}')
        if typ == 'b':
            a(f'v_cmp_gt_u32 vcc, 24, v{T + 1}', f'v_lshrrev_b32 v{T + 4}, 5, v{vL}', f'v_lshlrev_b32 v{T + 4}, 5, v{T + 4}',
              f'v_sub_u32 v{T + 4}, {L_ONES + 48}, v{T + 4}', f'v_cndmask_b32 v{vMSKW}, 0, -1, vcc')
        for t in range(4):
            a(f's_add_u32 s{sT0}, s{sKQ}, {t}', f's_and_b32 s{sT0}, s{sT0}, 3', f's_mul_i32 s{sT0}, s{sT0}, {16 * pitch}',
              f's_add_u32 s{sT0}, s{sT0}, {img}', f's_add_u32 s{sT1}, s{sT0}, 64',
              f'v_add_u32 v{vAW0 + t}, s{sT0}, v{T + 2}', f'v_add_u32 v{vAW1 + t}, s{sT1}, v{T + 3}')
            if typ == 'b':
                a(f'v_cndmask_b32 v{vAW1 + t}, v{T + 4}, v{vAW1 + t}, vcc')

    def p1_reads(self, typ, tau):
        pitch = 144 if typ == 'a' else 112
        f = FR(tau & 1)
        return [f'ds_read_b128 {v(f, 4)}, v{vAX + tau}',
                f'ds_read_b64_tr_b16 {v(f + 8, 2)}, v{vAW0 + tau}', f'ds_read_b64_tr_b16 {v(f + 10, 2)}, v{vAW0 + tau} offset:{pitch}',
                f'ds_read_b64_tr_b16 {v(f + 12, 2)}, v{vAW1 + tau}', f'ds_read_b64_tr_b16 {v(f + 14, 2)}, v{vAW1 + tau} offset:{pitch}',
                f'ds_read_b128 {v(f + 4, 4)}, v{vAX + tau} offset:4096']

    def p1_group(self, typ, st, colsum, reads, extra):
        f = FR(st)
        m = [f'v_mfma_f32_32x32x16_bf16 {v(ACC(tu, u), 16)}, {v(f + 8 + 4 * u, 4)}, {v(f + 4 * tu, 4)}, {v(ACC(tu, u), 16)}'
             for tu, u in ((0, 0), (0, 1), (1, 0), (1, 1))]
        xs = f + (0 if typ == 'a' else 4)
        q = []
        for i in range(4):
            t0, t1 = vT + 2 * (i & 1), vT + 2 * (i & 1) + 1
            q.append([f'v_lshlrev_b32 v{t0}, 16, v{xs + i}', f'v_and_b32 v{t1}, s{sHI}, v{xs + i}',
                      f'v_fmac_f32 v{vQ0}, v{t0}, v{t0}', f'v_fmac_f32 v{vQ1}, v{t1}, v{t1}'])
        cs = [[], [], [], []]
        if colsum:
            c = lambda u, hf: f'v_mfma_f32_4x4x4_16b_bf16 {v(vCS(u), 4)}, {v(vONE, 2)}, {v(f + 8 + 4 * u + 2 * hf, 2)}, {v(vCS(u), 4)}'
            cs = [[c(0, 0)], [c(1, 0)], [c(0, 1)], [c(1, 1)]]
        out = []
        nr = len(reads)
        ne = len(extra)
        for i in range(4):
            out.append(m[i])
            out += reads[(i * nr) // 3:((i + 1) * nr) // 3] if i < 3 else []
            for x in extra[(i * ne) // 4:((i + 1) * ne) // 4]:
                out += x if isinstance(x, list) else [x]
            out += q[i]
            out += cs[i]
        return out

    def p1_loop(self, typ):
        a = self.a
        lp = f'L_P1{typ}'
        upd = [f's_add_u32 s{sT3}, s{sRSL}, {SLOT}', f's_cmp_eq_u32 s{sT3}, {3 * SLOT}', f's_cselect_b32 s{sT3}, 0, s{sT3}',
               f's_sub_u32 s{sDLT}, s{sT3}, s{sRSL}', f's_mov_b32 s{sRSL}, s{sT3}']
        upd += [f'v_add_u32 v{vAX + t}, s{sDLT}, v{vAX + t}' for t in range(4)]
        upd += [f'v_add_u32 v{vAW0 + t}, s{sDLT}, v{vAW0 + t}' for t in range(4)]
        if typ == 'a':
            upd += [f'v_add_u32 v{vAW1 + t}, s{sDLT}, v{vAW1 + t}' for t in range(4)]
        else:
            upd += [f'v_and_b32 v{vT + 4}, s{sDLT}, v{vMSKW}'] + [f'v_add_u32 v{vAW1 + t}, v{vT + 4}, v{vAW1 + t}' for t in range(4)]
        off = [f's_cmp_le_u32 s{sCNT}, 2', f's_cselect_b32 s{sX + 2}, 0, s{sX + 2}', f's_cselect_b32 s{sWA + 2}, 0, s{sWA + 2}',
               f's_cselect_b32 s{sWB + 2}, 0, s{sWB + 2}']
        a('s_waitcnt vmcnt(0) lgkmcnt(0)' if False else 's_waitcnt vmcnt(7) lgkmcnt(0)')
        a(f's_branch {lp}_in')
        a('.p2align 3')
        a(f'{lp}:', 's_waitcnt vmcnt(6) lgkmcnt(0)', f'{lp}_in:', 's_barrier')
        a(self.p1_reads(typ, 0))
        a(off)
        a(self.p1_group(typ, 1, False, [], self.dma_group()))
        a('s_waitcnt lgkmcnt(0)')
        a(self.p1_group(typ, 0, True, self.p1_reads(typ, 1), []))
        a('s_waitcnt lgkmcnt(0)')
        a(self.p1_group(typ, 1, False, self.p1_reads(typ, 2), []))
        a('s_waitcnt lgkmcnt(0)')
        g = self.p1_group(typ, 0, False, self.p1_reads(typ, 3), [])
        a(g)
        a(upd)
        a(f's_sub_u32 s{sCNT}, s{sCNT}, 1', f's_cmp_lg_u32 s{sCNT}, 0', f's_cbranch_scc1 {lp}')
        a('s_waitcnt lgkmcnt(0)')
        a(self.p1_group(typ, 1, False, [], []))
        self.stamp(4)
        T = vT
        tu = 0 if typ == 'a' else 1
        a(f'v_and_b32 v{T + 4}, 31, v{vL}', f'v_lshlrev_b32 v{T + 4}, 2, v{T + 4}', f's_lshl_b32 s{sT0}, s{sKQ}, 8',
          f's_add_u32 s{sT0}, s{sT0}, {STAT}', f'v_add_u32 v{T + 5}, s{sT0}, v{T + 4}', f'v_add_u32 v{T + 4}, {L_CS + (0 if typ == "a" else 256)}, v{T + 4}',
          f'v_add_f32 v{vQ0}, v{vQ0}, v{vQ1}', f'ds_add_f32 v{T + 5}, v{vQ0} offset:{128 * tu}',
          f'ds_add_f32 v{T + 4}, v{vCS(0)}', f'ds_add_f32 v{T + 4}, v{vCS(1)} offset:128')
        a(f'v_readfirstlane_b32 s{sTAG}, v{vE}', 's_nop 3')
        if typ == 'b':
            a('s_nop 4', f'ds_write_b32 v{T + 5}, v{ACC(0, 1) + 12} offset:1024', f'ds_write_b32 v{T + 5}, v{ACC(1, 1) + 12} offset:{1024 + 128}')
        a(f's_add_u32 s{sTAG}, s{sTAG}, 1', f's_not_b32 s{sTAG + 1}, s{sTAG}')
        a('s_waitcnt vmcnt(0) lgkmcnt(0)', 's_barrier')
        for t in range(2):
            a(f'ds_read_b32 v{vAX + t}, v{T + 5} offset:{1024 + 128 * t}', f'ds_read_b32 v{vAX + 2 + t}, v{T + 5} offset:{128 * t}')
        a(f'v_lshrrev_b32 v{T + 4}, 5, v{vL}', f'v_lshlrev_b32 v{T + 4}, 4, v{T + 4}', f'v_add_u32 v{T + 4}, {L_CS + (0 if typ == "a" else 256)}, v{T + 4}')
        for u in range(2):
            for i in range(4):
                a(f'ds_read_b128 {v(FR(0) + 16 * u + 4 * i, 4)}, v{T + 4} offset:{128 * u + 32 * i}')

    def stats_math(self):
        a = self.a
        a('s_waitcnt lgkmcnt(8)', f's_mov_b32 s{sT0}, {f2u(1.0 / 640)}')
        for t in range(2):
            m, r = vAW0 + 2 * t, vAW1 + 2 * t
            a(f'v_mul_f32 v{m}, s{sT0}, v{vAX + t}', f'v_mul_f32 v{r}, s{sT0}, v{vAX + 2 + t}', f'v_fma_f32 v{r}, -v{m}, v{m}, v{r}',
              f'v_max_f32 v{r}, 0, v{r}', f'v_add_f32 v{r}, {f2u(1e-5)}, v{r}', f'v_rsq_f32 v{r}, v{r}')
        a('s_waitcnt lgkmcnt(0)')

    def fold(self, tu, u, i0, n, scale):
        out = []
        for i in range(i0, i0 + n, 2):
            d = ACC(tu, u) + i
            out.append(f'v_pk_fma_f32 {v(d, 2)}, {v(FR(0) + 16 * u + i, 2)}, {v(vAW0 + 2 * tu, 2)}, {v(d, 2)} op_sel_hi:[1,0,1] neg_lo:[0,1,0] neg_hi:[0,1,0]')
        for i in range(i0, i0 + n, 2):
            d = ACC(tu, u) + i
            out.append(f'v_pk_mul_f32 {v(d, 2)}, {v(d, 2)}, {v(scale, 2)} op_sel_hi:[1,0]')
        return out

    @staticmethod
    def cvt(d, src, n):
        return [f'v_cvt_pk_bf16_f32 v{d + i}, v{src + 2 * i}, v{src + 2 * i + 1}' for i in range(n)]

    def zero_acc_area(self):
        a = self.a
        T = vT
        a(f'v_lshlrev_b32 v{T}, 4, v0', f'v_add_u32 v{T}, {L_OACC}, v{T}')
        a([f'v_mov_b32 v{vDX + i}, 0' for i in range(4)])
        a([f'ds_write_b128 v{T}, {v(vDX, 4)} offset:{8192 * i}' for i in range(5)])
        a(f'v_lshlrev_b32 v{T}, 3, v0', f'v_add_u32 v{T}, {L_OACC + 40960}, v{T}', f'ds_write_b64 v{T}, {v(vDX, 2)}')

    def role_a(self):
        a = self.a
        T = vT
        self.w_addr('a')
        a([f'v_mov_b32 v{r}, 0' for r in range(O_(0), O_(0) + 100)])
        self.stamp(3)
        self.p1_loop('a')
        self.zero_acc_area()
        self.stats_math()
        vK, vV, vR, vIDX, vFA, vFD = 226, 227, 228, 229, 238, 240
        vSC = 242
        vWA = 250
        vTR, vCV = 239, 254
        a(f'v_and_b32 v{T}, 31, v{vL}', f'v_lshrrev_b32 v{T + 1}, 5, v{vL}', f'v_cmp_gt_u32 s[{sMSK}:{sMSK + 1}], 32, v{vL}',
          f'v_cmp_gt_u32 s[{sMSK2}:{sMSK2 + 1}], 20, v{T}', f'v_cmp_gt_u32 vcc, 21, v{T}',
          f'v_lshlrev_b32 v{vK}, 4, v{vL}', f'v_mul_u32_u24 v{T + 2}, 21, v{T + 1}', f'v_add_u32 v{T + 2}, v{T + 2}, v{T}',
          f'v_lshlrev_b32 v{T + 2}, 4, v{T + 2}', f'v_add_u32 v{T + 2}, 1024, v{T + 2}', f'v_mov_b32 v{T + 3}, {OOB}',
          f'v_cndmask_b32 v{vV}, v{T + 3}, v{T + 2}, vcc', f'v_min_u32 v{vR}, 32, v{vL}', f'v_lshlrev_b32 v{vR}, 3, v{vR}',
          f'v_add_u32 v{vR}, 2368, v{vR}', f'v_mov_b32 v{vIDX}, 0xdddddddd',
          f'v_cmp_eq_u32 vcc, 20, v{T}', f'v_mov_b32 v{T + 3}, 0x3f803f80', 's_nop 0', f'v_cndmask_b32 v{vCV}, 0, v{T + 3}, vcc')
        a(f's_mul_i32 s{sT0}, s{sKQ}, 2560', f'v_mul_u32_u24 v{T + 2}, 40, v{T}', f'v_add_u32 v{T + 2}, s{sT0}, v{T + 2}',
          f's_lshl_b32 s{sT1}, s{sKQ}, 9', f's_add_u32 s{sT1}, s{sT1}, {L_QR}', f'v_lshl_add_u32 v{T + 3}, v{T}, 3, s{sT1}',
          f'v_cndmask_b32 v{vWA}, v{T + 2}, v{T + 3}, s[{sMSK}:{sMSK + 1}]',
          f'v_add_u32 v{vWA + 1}, 8, v{T + 2}',
          f'v_lshl_add_u32 v{vWA + 2}, v{T + 1}, 3, v{T + 2}', f'v_add_u32 v{vWA + 2}, 16, v{vWA + 2}',
          f'v_add_u32 v{vWA + 3}, 32, v{T + 2}')
        a(f's_bitcmp1_b32 s{sH}, 0', f's_cselect_b32 s{sT1}, 0x04231, 0x43120',
          f'v_bfe_u32 v{T + 2}, v{vL}, 4, 1', f'v_and_b32 v{T + 3}, 3, v{vL}', f'v_lshl_add_u32 v{T + 2}, v{T + 2}, 2, v{T + 3}',
          f'v_lshlrev_b32 v{T + 2}, 2, v{T + 2}', f'v_lshrrev_b32 v{T + 2}, v{T + 2}, s{sT1}', f'v_and_b32 v{T + 2}, 15, v{T + 2}',
          f'v_bfe_u32 v{T + 3}, v{vL}, 2, 2', f'v_lshl_add_u32 v{T + 3}, v{T + 1}, 3, v{T + 3}', f'v_mul_u32_u24 v{T + 3}, 40, v{T + 3}',
          f'v_lshl_add_u32 v{T + 2}, v{T + 2}, 3, v{T + 3}', f'v_add_u32 v{vTR}, s{sT0}, v{T + 2}')
        a(f's_lshl_b32 s{sT1}, s{sKQ}, 11', f's_add_u32 s{sT1}, s{sT1}, {L_Q}', f'v_add_u32 v{vFA}, s{sT1}, v{vK}')
        a(f's_mul_i32 s{sKB}, s{sH}, {64 * REC}', f's_mul_i32 s{sT0}, s{sKQ}, {2 * REC}', f's_add_u32 s{sKB}, s{sKB}, s{sT0}',
          f's_mul_i32 s{sKC}, s{sB}, {8 * REC}', f's_add_u32 s{sKC}, s{sKC}, s{sKB}', f's_mov_b32 s{sT5}, {f2u(CSCALE)}')
        for tu in range(2):
            r = vAW1 + 2 * tu
            kv = KV_(tu)
            a(f'v_mul_f32 v{vSC}, s{sT5}, v{r}', 's_nop 0', f'v_cndmask_b32 v{vSC + 2}, v{r}, v{vSC}, s[{sMSK}:{sMSK + 1}]')
            a(self.fold(tu, 0, 0, 8, vSC), self.fold(tu, 0, 8, 8, r), self.fold(tu, 1, 0, 4, vSC + 2), self.fold(tu, 1, 4, 12, r))
            A0, A1 = ACC(tu, 0), ACC(tu, 1)
            a(self.cvt(A0, A0, 4), self.cvt(kv, A0 + 8, 4), self.cvt(A1, A1, 8))
            a(f'ds_write_b128 v{vFA}, {v(A0, 4)} offset:{1024 * tu}')
            if tu == 0:
                a(f'ds_write_b64 v{vWA}, {v(A1, 2)}')
            else:
                a(f'v_mov_b32 v{T}, 1280', f'v_mov_b32 v{T + 1}, 256', f'v_cndmask_b32 v{T}, v{T}, v{T + 1}, s[{sMSK}:{sMSK + 1}]',
                  f'v_add_u32 v{vWA}, v{vWA}, v{T}', f'ds_write_b64 v{vWA}, {v(A1, 2)}')
            a(f'ds_write_b64 v{vWA + 2}, {v(A1 + 4, 2)} offset:{1280 * tu}')
            a(f's_not_b64 exec, s[{sMSK}:{sMSK + 1}]', f'ds_write_b64 v{vWA + 1}, {v(A1 + 2, 2)} offset:{1280 * tu}',
              f'v_mov_b32 v{A1 + 2}, 0x3f803f80', f'v_mov_b32 v{A1 + 3}, 0x3f80',
              f's_mov_b64 exec, s[{sMSK}:{sMSK + 1}]', f'ds_write_b64 v{vWA + 3}, {v(A1 + 6, 2)} offset:{1280 * tu}', 's_mov_b64 exec, -1')
            a(f'v_mov_b32 v{kv + 12}, v{A1 + 2}', f'v_mov_b32 v{kv + 13}, v{A1 + 3}')
            for ss in range(2):
                for e in range(2):
                    a(f'ds_read_b64_tr_b16 {v(kv + 4 + 4 * ss + 2 * e, 2)}, v{vTR} offset:{1280 * tu + (16 * ss + 4 * e) * 40}')
            so = sKC if tu == 0 else sT0
            if tu == 1:
                a(f's_add_u32 s{sT0}, s{sKC}, {REC}')
            a(f'buffer_store_dwordx4 {v(kv, 4)}, v{vK}, s[{sWS}:{sWS + 3}], s{so} offen sc1',
              f'buffer_store_dwordx2 {v(kv + 12, 2)}, v{vR}, s[{sWS}:{sWS + 3}], s{so} offen sc1')
            a('s_waitcnt lgkmcnt(0)')
            a([f'v_cndmask_b32 v{kv + 4 + i}, v{vCV}, v{kv + 4 + i}, s[{sMSK2}:{sMSK2 + 1}]' for i in range(8)])
            a(f'buffer_store_dwordx4 {v(kv + 4, 4)}, v{vV}, s[{sWS}:{sWS + 3}], s{so} offen sc1',
              f'buffer_store_dwordx4 {v(kv + 8, 4)}, v{vV}, s[{sWS}:{sWS + 3}], s{so} offen offset:672 sc1')
        a('s_barrier')
        self.stamp(5)
        a('s_setprio 1')
        vPQ, vPM, vPO = 210, 214, 218
        a(f'v_and_b32 v{T}, 31, v{vL}')
        for j in range(4):
            a(f's_add_u32 s{sT0}, s{sKQ}, {j + 1}', f's_and_b32 s{sT0}, s{sT0}, 3',
              f's_lshl_b32 s{sT1}, s{sT0}, 11', f's_add_u32 s{sT1}, s{sT1}, {L_Q}', f'v_add_u32 v{vPQ + j}, s{sT1}, v{vK}',
              f's_lshl_b32 s{sT1}, s{sT0}, 9', f's_add_u32 s{sT1}, s{sT1}, {L_QR}', f'v_lshl_add_u32 v{T + 1}, v{T}, 3, s{sT1}',
              f'ds_read_b128 {v(Q_(2 * j), 4)}, v{vPQ + j}', f'ds_read_b128 {v(Q_(2 * j + 1), 4)}, v{vPQ + j} offset:1024',
              f'ds_read_b64 {v(Q_(2 * j) + 4, 2)}, v{T + 1}', f'ds_read_b64 {v(Q_(2 * j + 1) + 4, 2)}, v{T + 1} offset:256',
              f's_lshl_b32 s{sT1}, s{sT0}, 8', f's_add_u32 s{sT1}, s{sT1}, {L_M}', f'v_lshl_add_u32 v{vPM + j}, v{T}, 2, s{sT1}',
              f's_mul_i32 s{sT1}, s{sT0}, 6144', f's_add_u32 s{sT1}, s{sT1}, {L_OACC}', f'v_lshl_add_u32 v{vPO + j}, v{vL}, 2, s{sT1}')
        a(f's_lshl_b32 s{sT0}, s{sH}, 2', f's_add_u32 s{sT0}, s{sT0}, s{sKQ}', f's_lshl_b32 s{sT0}, s{sT0}, 7', f's_add_u32 s{sT0}, s{sT0}, {FKV}',
          f'v_and_b32 v{vFA}, 7, v{vL}', f'v_lshl_add_u32 v{vFA}, v{vFA}, 3, s{sT0}')
        a('s_waitcnt lgkmcnt(0)')
        a('L_REDO:')
        a(f's_not_b64 exec, s[{sMSK}:{sMSK + 1}]', [f'v_mov_b32 v{Q_(t) + 4 + i}, 0' for t in range(8) for i in range(2)], 's_mov_b64 exec, -1')
        a('L_PRE:')
        qk = lambda t: [f'v_mfma_f32_32x32x16_bf16 {v(S_(t & 1), 16)}, {v(KV_(0), 4)}, {v(Q_(t), 4)}, 0',
                        f'v_mfma_f32_32x32x8_bf16 {v(S_(t & 1), 16)}, {v(KV_(0) + 12, 2)}, {v(Q_(t) + 4, 2)}, {v(S_(t & 1), 16)}']
        a('s_nop 1', qk(0), qk(1), 's_nop 9')
        for t in range(8):
            Sx = S_(t & 1)
            mx = [f'v_max3_f32 v{T}, v{Sx}, v{Sx + 1}, v{Sx + 2}', f'v_max3_f32 v{T + 1}, v{Sx + 3}, v{Sx + 4}, v{Sx + 5}']
            mx += [f'v_max3_f32 v{T + (i & 1)}, v{T + (i & 1)}, v{Sx + 6 + 2 * i}, v{Sx + 7 + 2 * i}' for i in range(5)]
            mx += [f'v_max_f32 v{T + 2 + (t & 1)}, v{T}, v{T + 1}']
            a(mx)
            if t + 2 < 8:
                a(qk(t + 2))
            a(f'ds_max_f32 v{vPM + t // 2}, v{T + 2 + (t & 1)} offset:{128 * (t & 1)}')
            if t < 7:
                a('s_nop 1' if t + 2 < 8 else 's_nop 3')
        a(f's_cmp_eq_u32 s{sMODE}, 0', 's_cbranch_scc0 L_PRE_EXACT')
        a('s_waitcnt vmcnt(0)', f's_lshl_b32 s{sT1}, s{sH}, 2', f's_add_u32 s{sT1}, s{sT1}, s{sKQ}', f's_lshl_b32 s{sT1}, s{sT1}, 7',
          f's_lshl_b32 s{sT2}, s{sB}, 3', f's_add_u32 s{sT1}, s{sT1}, s{sT2}', f's_add_u32 s{sT1}, s{sT1}, {FKV}')
        self.post(sT1, T)
        a('L_PRE_DONE:')
        self.softbar(0, T)
        for t in range(8):
            a(f'ds_read_b32 v{S_(0) + t}, v{vPM + t // 2} offset:{128 * (t & 1)}')
        a('s_waitcnt lgkmcnt(0)', f's_not_b64 exec, s[{sMSK}:{sMSK + 1}]')
        for t in range(8):
            x, q = S_(0) + t, Q_(t) + 4
            a(f'v_sub_f32 v{x}, -v{x}, s{sDEL}' if False else f'v_add_f32 v{x}, s{sDEL}, v{x}',
              f'v_xor_b32 v{x}, 0x80000000, v{x}',
              f'v_and_b32 v{T}, s{sHI}, v{x}', f'v_sub_f32 v{x}, v{x}, v{T}',
              f'v_and_b32 v{T + 1}, s{sHI}, v{x}', f'v_sub_f32 v{x}, v{x}, v{T + 1}',
              f'v_lshrrev_b32 v{T}, 16, v{T}', f'v_or_b32 v{q}, v{T}, v{T + 1}', f'v_lshrrev_b32 v{q + 1}, 16, v{x}')
        a('s_mov_b64 exec, -1')
        a([f'v_mov_b32 v{S_(1) + 8 + i}, 0' for i in range(8)])
        a(f's_mov_b32 s{sBLK}, s{sB}', f's_mov_b32 s{sCNT}, 8')
        a(f'v_mfma_f32_32x32x16_bf16 {v(S_(0), 16)}, {v(KV_(0), 4)}, {v(Q_(0), 4)}, 0',
          f'v_mfma_f32_32x32x8_bf16 {v(S_(0), 16)}, {v(KV_(0) + 12, 2)}, {v(Q_(0) + 4, 2)}, {v(S_(0), 16)}', 's_nop 11')
        self.stamp(6)
        ld4 = lambda d, va, so, off=0: f'buffer_load_dwordx4 {v(d, 4)}, v{va}, s[{sWS}:{sWS + 3}], s{so} offen' + (f' offset:{off}' if off else '') + ' sc1'
        ld2 = lambda d, va, so, off=0: f'buffer_load_dwordx2 {v(d, 2)}, v{va}, s[{sWS}:{sWS + 3}], s{so} offen' + (f' offset:{off}' if off else '') + ' sc1'
        a('.p2align 3', 'L_ATT:')
        for n in range(16):
            cur, oth = S_(n & 1), S_((n + 1) & 1)
            kp, kc, kn = KV_(((n - 1) % 16) // 8), KV_(n // 8), KV_(((n + 1) % 16) // 8)
            qn = Q_((n + 1) % 8)
            p2 = f'v_smfmac_f32_32x32x32_bf16 {v(O_((n - 1) % 8), 16)}, {v(kp + 8, 4)}, {v(oth + 8, 8)}, v{vIDX}'
            mm = f'v_mfma_f32_32x32x16_bf16 {v(oth, 16)}, {v(kn, 4)}, {v(qn, 4)}, 0'
            rr = f'v_mfma_f32_32x32x8_bf16 {v(oth, 16)}, {v(kn + 12, 2)}, {v(qn + 4, 2)}, {v(oth, 16)}'
            p1 = f'v_smfmac_f32_32x32x32_bf16 {v(O_(n % 8), 16)}, {v(kc + 4, 4)}, {v(cur, 8)}, v{vIDX}'
            ex = {1: [p2], 4: [mm], 7: [rr], 11: [p1]}
            if n == 0:
                ex[1] += [f's_add_u32 s{sT1}, s{sKC}, {REC}']
                ex[4] += [ld4(KV_(1) + 4, vV, sT1)]
                ex[7] += [ld4(KV_(1) + 8, vV, sT1, 672)]
                ex[11] += [f'buffer_load_dwordx2 {v(vFD, 2)}, v{vFA}, s[{sWS}:{sWS + 3}], 0 offen sc1']
            if n == 1:
                ex[1] += [f's_add_u32 s{sBLK}, s{sBLK}, 1']
                ex[4] += [f's_and_b32 s{sBLK}, s{sBLK}, 7']
                ex[11] += [f's_mul_i32 s{sKN}, s{sBLK}, {8 * REC}']
            if n == 2:
                ex[1] += [f's_add_u32 s{sKN}, s{sKN}, s{sKB}']
            if n == 7:
                ex[1] += ['s_waitcnt vmcnt(0)']
                ex[4] += [f'v_cmp_eq_u64 vcc, s[{sTAG}:{sTAG + 1}], {v(vFD, 2)}']
                ex[7] += [f's_bitcmp1_b32 vcc_lo, s{sBLK}', 's_cbranch_scc0 L_FLAGWAIT', 'L_FLAGOK:', ld4(KV_(0), vK, sKN)]
                ex[11] += [ld2(KV_(0) + 12, vR, sKN)]
            if n == 8:
                ex[4] += [ld4(KV_(0) + 4, vV, sKN)]
                ex[7] += [ld4(KV_(0) + 8, vV, sKN, 672)]
            if n == 15:
                ex[1] += ['s_waitcnt vmcnt(0)']
                ex[4] += [f's_mov_b32 s{sKC}, s{sKN}']
                ex[7] += [ld4(KV_(1), vK, sKN, REC)]
                ex[11] += [ld2(KV_(1) + 12, vR, sKN, REC - 2048) if False else f's_add_u32 s{sT1}, s{sKN}, {REC}', ld2(KV_(1) + 12, vR, sT1)]
                ex[13] = [f's_sub_u32 s{sCNT}, s{sCNT}, 1']
                ex[14] = [f's_cmp_lg_u32 s{sCNT}, 0']
            a(weave([f'v_exp_f32 v{cur + i}, v{cur + i}' for i in range(16)], ex))
        a('s_cbranch_scc1 L_ATT')
        a('s_nop 1', f'v_smfmac_f32_32x32x32_bf16 {v(O_(7), 16)}, {v(KV_(1) + 8, 4)}, {v(S_(1) + 8, 8)}, v{vIDX}')
        self.stamp(7)
        for t in range(6):
            a([f'ds_add_f32 v{vPO + t // 2}, v{O_(t) + i} offset:{3072 * (t & 1) + 256 * i}' for i in range(12)])
        self.softbar(0, T)
        X = S_(0)
        for tt in range(2):
            a([f'ds_read2st64_b32 {v(X + 12 * tt + 2 * i, 2)}, v{vPO + 3} offset0:{12 * tt + 2 * i} offset1:{12 * tt + 2 * i + 1}' for i in range(6)])
        vOm, vOr = 210, 211
        a(f'v_bfe_u32 v{T}, v{vL}, 4, 1', f'v_mul_u32_u24 v{T}, 20480, v{T}', f'v_and_b32 v{T + 1}, 15, v{vL}', f'v_lshl_add_u32 v{T}, v{T + 1}, 4, v{T}',
          f'v_lshrrev_b32 v{T + 1}, 5, v{vL}', f'v_lshl_add_u32 v{vOm}, v{T + 1}, 8, v{T}', f'v_mov_b32 v{T + 1}, {OOB}',
          f'v_cndmask_b32 v{vOr}, v{T + 1}, v{T}, s[{sMSK}:{sMSK + 1}]')
        a(f's_lshl_b32 s{sT1}, s{sB}, 2', f's_add_u32 s{sT1}, s{sT1}, s{sKQ}', f's_mul_i32 s{sT2}, s{sT1}, {4 * 20480}', f's_add_u32 s{sT2}, s{sT2}, {O_OFF}',
          f's_mul_i32 s{sT3}, s{sH}, 640', f's_add_u32 s{sT2}, s{sT2}, s{sT3}',
          f's_bitcmp1_b32 s{sH}, 0', f's_cselect_b32 s{sT3}, 128, 0', f's_cselect_b32 s{sT4}, -120, 512',
          f's_add_u32 s{sT3}, s{sT2}, s{sT3}', f's_add_u32 s{sT4}, s{sT2}, s{sT4}',
          f's_lshl_b32 s{sT1}, s{sT1}, 8', f's_lshl_b32 s{sT2}, s{sH}, 3', f's_add_u32 s{sT1}, s{sT1}, s{sT2}', f's_add_u32 s{sKN}, s{sT1}, {FO}')
        a(f'v_mov_b32 v{T + 6}, 0', f'v_mov_b32 v{T + 7}, 0', f'v_mov_b32 v{vFD}, 0', f'v_mov_b32 v{vFD + 1}, 0', 's_waitcnt lgkmcnt(0)')
        a(f's_mov_b64 s[{sMSK2}:{sMSK2 + 1}], -1')
        for tt in range(2):
            Y, Oo = X + 12 * tt, O_(6 + tt)
            a([f'v_pk_add_f32 {v(Y + 2 * i, 2)}, {v(Y + 2 * i, 2)}, {v(Oo + 2 * i, 2)}' for i in range(6)])
            a(f'v_mov_b32 v{T}, v{Y + 8}', f'v_mov_b32 v{T + 1}, v{Y + 8}', 's_nop 1', f'v_permlane32_swap_b32 v{T}, v{T + 1}',
              f'v_rcp_f32 v{T + 2}, v{T + 1}', f'v_cmp_gt_f32 vcc, {f2u(2.0 ** 120)}, v{T + 1}')
            a([f'v_pk_fma_f32 {v(T + 6, 2)}, {v(Y + 2 * i, 2)}, {v(vFD, 2)}, {v(T + 6, 2)}' for i in range(6)])
            a(f's_and_b64 s[{sMSK2}:{sMSK2 + 1}], s[{sMSK2}:{sMSK2 + 1}], vcc', f'v_cmp_lt_f32 vcc, {f2u(2.0 ** -110)}, v{T + 1}')
            a([f'v_pk_mul_f32 {v(Y + 2 * i, 2)}, {v(Y + 2 * i, 2)}, {v(T + 2, 2)} op_sel_hi:[1,0]' for i in range(6)])
            a(f's_and_b64 s[{sMSK2}:{sMSK2 + 1}], s[{sMSK2}:{sMSK2 + 1}], vcc')
            a(self.cvt(Y, Y, 6))
        a(f'v_add_f32 v{T + 6}, v{T + 6}, v{T + 7}', f'v_cmp_eq_f32 vcc, 0, v{T + 6}', 's_nop 1',
          f's_and_b64 s[{sMSK2}:{sMSK2 + 1}], s[{sMSK2}:{sMSK2 + 1}], vcc')
        if self.force_fb:
            a(f's_cmp_eq_u32 s{sKQ}, 1', f's_cselect_b64 s[{sMSK2}:{sMSK2 + 1}], 0, s[{sMSK2}:{sMSK2 + 1}]')
        a(f's_cmp_eq_u64 s[{sMSK2}:{sMSK2 + 1}], -1', f's_cselect_b32 s{sT1}, 1, s{sMODE}',
          f's_cmp_eq_u32 s{sT1}, 0', 's_cbranch_scc1 L_BAD', f's_cmp_eq_u32 s{sPUB}, 0', 's_cbranch_scc0 L_PUBDONE')
        for tt in range(2):
            Y = X + 12 * tt
            a(f'buffer_store_dwordx4 {v(Y, 4)}, v{vOm}, s[{sWS}:{sWS + 3}], s{sT3} offen sc1',
              f'buffer_store_dwordx2 {v(Y + 4, 2)}, v{vOr}, s[{sWS}:{sWS + 3}], s{sT4} offen sc1')
            if tt == 0:
                a(f's_add_u32 s{sT3}, s{sT3}, {2 * 20480}', f's_add_u32 s{sT4}, s{sT4}, {2 * 20480}')
        a('s_waitcnt vmcnt(0)')
        self.post(sKN, T)
        a(f's_mov_b32 s{sPUB}, 1', 's_branch L_PUBDONE')
        a('L_BAD:', f'v_mov_b32 v{T}, {L_CNT + 8}', f'v_mov_b32 v{T + 1}, 1', f'ds_write_b32 v{T}, v{T + 1}')
        a('L_PUBDONE:')
        self.stamp(8)
        a(f's_cmp_eq_u32 s{sMODE}, 0', 's_cbranch_scc0 L_FIN')
        self.softbar(0, T)
        a(f'v_mov_b32 v{T}, {L_CNT + 8}', f'ds_read_b32 v{T + 1}, v{T}', 's_waitcnt lgkmcnt(0)', f'v_readfirstlane_b32 s{sT1}, v{T + 1}', 's_nop 0',
          f's_cmp_eq_u32 s{sT1}, 0', 's_cbranch_scc1 L_FIN')
        a(f's_mov_b32 s{sMODE}, 1', f's_mov_b32 s{sDEL}, 0', f'v_mov_b32 v{T}, 0xff800000', f'v_mov_b32 v{T + 1}, 0',
          f'ds_write_b32 v{vPM + 3}, v{T}', f'ds_write_b32 v{vPM + 3}, v{T} offset:128')
        a([f'ds_write_b32 v{vPO + 3}, v{T + 1} offset:{256 * i}' for i in range(24)])
        a([f'v_mov_b32 v{r}, 0' for r in range(O_(0), O_(0) + 100)])
        self.softbar(0, T)
        a(f's_mov_b32 s{sCNT}, 0', f's_mov_b32 s{sT1}, s{sKB}', ld4(KV_(0), vK, sT1), ld2(KV_(0) + 12, vR, sT1), 's_waitcnt vmcnt(0)', 's_branch L_REDO')
        a('L_PRE_EXACT:', f's_add_u32 s{sCNT}, s{sCNT}, 1', f's_cmp_eq_u32 s{sCNT}, 16', 's_cbranch_scc1 L_PRE_LAST',
          f's_lshr_b32 s{sT1}, s{sCNT}, 1', f's_lshl_b32 s{sT1}, s{sT1}, 3', f's_and_b32 s{sT2}, s{sCNT}, 1', f's_add_u32 s{sT1}, s{sT1}, s{sT2}',
          f's_mul_i32 s{sT1}, s{sT1}, {REC}', f's_add_u32 s{sT1}, s{sT1}, s{sKB}',
          ld4(KV_(0), vK, sT1), ld2(KV_(0) + 12, vR, sT1), 's_waitcnt vmcnt(0)', 's_branch L_PRE')
        a('L_PRE_LAST:', f's_mul_i32 s{sKC}, s{sB}, {8 * REC}', f's_add_u32 s{sKC}, s{sKC}, s{sKB}', f's_add_u32 s{sT1}, s{sKC}, {REC}',
          ld4(KV_(0), vK, sKC), ld2(KV_(0) + 12, vR, sKC), ld4(KV_(0) + 4, vV, sKC), ld4(KV_(0) + 8, vV, sKC, 672),
          ld4(KV_(1), vK, sT1), ld2(KV_(1) + 12, vR, sT1), 's_waitcnt vmcnt(0)', 's_branch L_PRE_DONE')
        a('L_FLAGWAIT:', f's_lshl_b32 s{sT1}, 1, s{sBLK}')
        self.poll(vFA, vFD, 0, f's{sT1}')
        a('s_branch L_FLAGOK')

    def role_b(self):
        a = self.a
        T = vT
        a('L_B:')
        self.w_addr('b')
        self.stamp(3)
        self.p1_loop('b')
        self.zero_acc_area()
        self.stats_math()
        vHs, vH6 = 226, 227
        a(f'v_bfe_u32 v{T}, v{vL}, 4, 1', f'v_mul_u32_u24 v{T}, 55296, v{T}', f'v_and_b32 v{T + 1}, 15, v{vL}', f'v_lshl_add_u32 v{T}, v{T + 1}, 4, v{T}',
          f'v_lshrrev_b32 v{T + 1}, 5, v{vL}', f'v_lshl_add_u32 v{vHs}, v{T + 1}, 8, v{T}', f'v_lshl_add_u32 v{vH6}, v{T + 1}, 3, v{T}',
          f's_and_b32 s{sT0}, s{sH}, 3', f's_cmp_eq_u32 s{sT0}, 3', f's_cselect_b32 s{sT0}, {OOB}, 1536', f'v_add_u32 v{vH6}, s{sT0}, v{vH6}')
        a(f's_lshl_b32 s{sT1}, s{sB}, 2', f's_add_u32 s{sT1}, s{sT1}, s{sKQ}', f's_mul_i32 s{sT2}, s{sT1}, {4 * 55296}',
          f's_lshl_b32 s{sT3}, s{sG0}, 8', f's_add_u32 s{sT2}, s{sT2}, s{sT3}', f's_add_u32 s{sT2}, s{sT2}, {H_OFF}',
          f's_lshl_b32 s{sT1}, s{sT1}, 8', f's_lshl_b32 s{sT3}, s{sH}, 3', f's_add_u32 s{sT1}, s{sT1}, s{sT3}', f's_add_u32 s{sKN}, s{sT1}, {FH}')
        for tu in range(2):
            r = vAW1 + 2 * tu
            A0, A1 = ACC(tu, 0), ACC(tu, 1)
            a(self.fold(tu, 0, 0, 16, r), self.fold(tu, 1, 0, 12, r), self.cvt(A0, A0, 8), self.cvt(A1, A1, 6))
            a([f'v_pk_max_i16 v{x}, v{x}, 0' for x in list(range(A0, A0 + 8)) + list(range(A1, A1 + 6))])
            for i, d in enumerate((A0, A0 + 4, A1)):
                a(f'buffer_store_dwordx4 {v(d, 4)}, v{vHs}, s[{sWS}:{sWS + 3}], s{sT2} offen offset:{512 * i} sc1')
            a(f'buffer_store_dwordx2 {v(A1 + 4, 2)}, v{vH6}, s[{sWS}:{sWS + 3}], s{sT2} offen sc1')
            if tu == 0:
                a(f's_add_u32 s{sT2}, s{sT2}, {2 * 55296}')
        a('s_waitcnt lgkmcnt(0)', 's_barrier')
        self.stamp(5)
        YA = lambda rt, ct: 2 + 20 * rt + 4 * ct
        HS = lambda u: 82 + 16 * u
        WF = lambda ct: 162 + 4 * ct
        vHr, vDm, vAWr, vYA, vOut, vXR, vFA, vFD = 182, 186, 191, 192, 196, 198, 208, 210
        a(f's_lshr_b32 s{sT4}, s{sH}, 3', f's_and_b32 s{sT5}, s{sH}, 7')
        a(f'v_lshlrev_b32 v{T}, 4, v{vL}')
        for j in range(4):
            a(f's_add_u32 s{sT0}, s{sKQ}, {j + 1}', f's_and_b32 s{sT0}, s{sT0}, 3', f's_mul_i32 s{sT1}, s{sT0}, 55296', f'v_add_u32 v{vHr + j}, s{sT1}, v{T}',
              f's_mul_i32 s{sT1}, s{sT0}, 5120', f's_add_u32 s{sT1}, s{sT1}, {L_YACC}', f'v_lshl_add_u32 v{vYA + j}, v{vL}, 2, s{sT1}')
        for i in range(5):
            a(f'v_add_u32 v{T}, {64 * i}, v{vL}', f'v_mul_u32_u24 v{T + 1}, 6554, v{T}', f'v_lshrrev_b32 v{T + 1}, 16, v{T + 1}',
              f'v_mul_u32_u24 v{T + 2}, 10, v{T + 1}', f'v_sub_u32 v{T}, v{T}, v{T + 2}',
              f'v_and_b32 v{T + 2}, 0x13, v{T + 1}', f'v_bfe_u32 v{T + 3}, v{T + 1}, 2, 1', f'v_lshl_add_u32 v{T + 2}, v{T + 3}, 3, v{T + 2}',
              f'v_bfe_u32 v{T + 3}, v{T + 1}, 3, 1', f'v_lshl_add_u32 v{T + 2}, v{T + 3}, 2, v{T + 2}',
              f'v_mul_u32_u24 v{T + 2}, 1280, v{T + 2}', f'v_lshl_add_u32 v{vDm + i}, v{T}, 4, v{T + 2}')
            if 0 < i < 4:
                a(f'v_subrev_u32 v{vDm + i}, {1024 * i}, v{vDm + i}')
        a(f'v_lshrrev_b32 v{T}, 5, v{vL}', f'v_bfe_u32 v{T + 1}, v{vL}, 4, 1', f'v_lshlrev_b32 v{T}, 4, v{T}', f'v_lshl_add_u32 v{T}, v{T + 1}, 2, v{T}',
          f'v_bfe_u32 v{T + 1}, v{vL}, 2, 2', f'v_add_u32 v{T}, v{T}, v{T + 1}', f'v_mul_u32_u24 v{T}, 160, v{T}', f'v_and_b32 v{T + 1}, 3, v{vL}',
          f'v_lshl_add_u32 v{vXR + 10 - 1 + 0}, v{T + 1}, 3, v{T}')
        vLane = vXR + 9
        a(f's_mul_i32 s{sM0X}, s{sKQ}, {RING}', f'v_add_u32 v{vAWr}, s{sM0X}, v{vLane}', f'v_mov_b32 v{vMSKW}, v{vLane}')
        a(f's_mul_i32 s{sT0}, s{sKQ}, 14', f's_cmp_eq_u32 s{sKQ}, 3', f's_cselect_b32 s{sT0}, 41, s{sT0}',
          f's_cmp_ge_u32 s{sKQ}, 2', f's_cselect_b32 s{sHE}, 13, 14',
          f's_mul_i32 s{sT1}, s{sT5}, 160', f's_mul_i32 s{sDS}, s{sT0}, {32 * 1280}', f's_add_u32 s{sDS}, s{sDS}, s{sT1}',
          f's_mul_i32 s{sKB}, s{sKQ}, {160 * 1280}', f's_add_u32 s{sKB}, s{sKB}, s{sT1}',
          f's_lshl_b32 s{sT1}, s{sB}, 2', f's_add_u32 s{sBLK}, s{sT1}, s{sT4}',
          f's_mul_i32 s{sHS}, s{sBLK}, {4 * 55296}', f's_lshl_b32 s{sT0}, s{sT0}, 10', f's_add_u32 s{sHS}, s{sHS}, s{sT0}', f's_add_u32 s{sHS}, s{sHS}, {H_OFF}')
        a(f's_lshl_b32 s{sT0}, s{sBLK}, 2', f's_add_u32 s{sT0}, s{sT0}, s{sKQ}', f's_mul_i32 s{sT0}, s{sT0}, {16 * 1280}', f's_mul_i32 s{sT1}, s{sT5}, 160',
          f's_add_u32 s{sT0}, s{sT0}, s{sT1}', f'v_and_b32 v{T}, 15, v{vL}', f'v_mul_u32_u24 v{T}, 1280, v{T}', f'v_lshrrev_b32 v{T + 1}, 4, v{vL}',
          f'v_lshl_add_u32 v{T}, v{T + 1}, 3, v{T}', f'v_add_u32 v{vOut}, s{sT0}, v{T}')
        a(f's_lshl_b32 s{sT0}, s{sBLK}, 8', f's_add_u32 s{sT0}, s{sT0}, {FH}', f'v_and_b32 v{vFA}, 31, v{vL}', f'v_lshl_add_u32 v{vFA}, v{vFA}, 3, s{sT0}')
        a([f'v_mov_b32 v{r}, 0' for r in range(YA(0, 0), YA(0, 0) + 80)])
        a('s_waitcnt vmcnt(0)')
        self.post(sKN, T)

        def wdma(u):
            l = [f's_add_u32 m0, s{sM0X}, {5120 * u}', 's_nop 0'] if not isinstance(u, str) else [f's_add_u32 m0, s{sM0X}, {u}', 's_nop 0']
            l += [f'buffer_load_dwordx4 v{vDm + i}, s[{sW2}:{sW2 + 3}], s{sDS} offen offset:{1024 * i} lds' for i in range(4)]
            l += ['s_add_u32 m0, m0, 4096', f's_add_u32 s{sT3}, s{sDS}, 0', f'buffer_load_dwordx4 v{vDm + 4}, s[{sW2}:{sW2 + 3}], s{sT3} offen lds',
                  f's_add_u32 s{sDS}, s{sDS}, {32 * 1280}']
            return l

        def hld(u):
            return [f'buffer_load_dwordx4 {v(HS(u) + 4 * j, 4)}, v{vHr + j}, s[{sWS}:{sWS + 3}], s{sHS} offen sc1' for j in range(4)] + \
                   [f's_add_u32 s{sHS}, s{sHS}, 1024']
        wrd = lambda u, ct, base=vAWr: [f'ds_read_b64_tr_b16 {v(WF(ct) + 2 * e, 2)}, v{base} offset:{5120 * u + 1280 * e + 32 * ct}' for e in range(2)]
        self.srd(sX, 4, 2621440)
        a([f'buffer_load_dwordx2 {v(vXR + 2 * ct, 2)}, v{vOut}, s[{sX}:{sX + 3}], 0 offen offset:{32 * ct}' for ct in range(5)])
        for u0 in (1, 2):
            if u0 == 1:
                a(f's_cmp_ge_u32 s{sKQ}, 2', 's_cbranch_scc1 L_W2_E2')
            else:
                a('L_W2_E2:')
            for j in range(5):
                a(wdma((u0 + j) % 5))
            self.poll(vFA, vFD, 0, -1)
            for j in range(5):
                a(hld((u0 + j) % 5))
            a('s_waitcnt vmcnt(0)')
            for ct in range(5):
                a(wrd(u0, ct))
            a(f's_branch L_W2_{u0}')
        a('.p2align 3')
        for u in range(5):
            a(f'L_W2_{u}:', 's_waitcnt vmcnt(31)')
            for ct in range(5):
                a('s_waitcnt lgkmcnt(8)')
                a([f'v_mfma_f32_16x16x32_bf16 {v(YA(rt, ct), 4)}, {v(WF(ct), 4)}, {v(HS(u) + 4 * rt, 4)}, {v(YA(rt, ct), 4)}' for rt in range(4)])
                a(wrd((u + 1) % 5, ct))
            a(f's_cmp_eq_u32 s{sHE}, 5', f's_cselect_b32 s{sW2}, s8, s{sW2}', f's_cselect_b32 s{sW2 + 1}, s9, s{sW2 + 1}',
              f's_cselect_b32 s{sW2 + 2}, {640 * 1280}, s{sW2 + 2}', f's_cselect_b32 s{sDS}, s{sKB}, s{sDS}',
              f's_cselect_b32 s{sHS}, {OOB}, s{sHS}')
            a(wdma(u), hld(u))
            a(f's_sub_u32 s{sHE}, s{sHE}, 1')
            if u == 4:
                a(f's_cmp_lg_u32 s{sHE}, 0', 's_cbranch_scc1 L_W2_0')
        self.stamp(6)
        a('s_nop 4')
        for rt in range(3):
            for ct in range(5):
                a([f'ds_add_f32 v{vYA + rt}, v{YA(rt, ct) + j} offset:{1024 * ct + 256 * j}' for j in range(4)])
        a('s_waitcnt vmcnt(0)')
        self.softbar(4, T)
        Y0 = YA(0, 0)
        a([f'ds_read2st64_b32 {v(Y0 + 2 * i, 2)}, v{vYA + 3} offset0:{2 * i} offset1:{2 * i + 1}' for i in range(10)])
        a(f'v_add_u32 v{vAWr}, 51200, v{vMSKW}', f'v_lshlrev_b32 v{vHr}, 4, v{vL}', f'v_add_u32 v{vFA}, {FO - FH}, v{vFA}')
        a(f's_lshl_b32 s{sT1}, s{sBLK}, 2', f's_add_u32 s{sT1}, s{sT1}, s{sKQ}', f's_mul_i32 s{sHS}, s{sT1}, 20480', f's_add_u32 s{sHS}, s{sHS}, {O_OFF}')
        a('s_waitcnt lgkmcnt(0)')
        F = YA(3, 0)
        a([f'v_pk_add_f32 {v(F + 2 * i, 2)}, {v(F + 2 * i, 2)}, {v(Y0 + 2 * i, 2)}' for i in range(10)])
        for ct in range(5):
            for j in range(2):
                x = vXR + 2 * ct + j
                a(f'v_lshlrev_b32 v{T}, 16, v{x}', f'v_and_b32 v{T + 1}, s{sHI}, v{x}',
                  f'v_pk_add_f32 {v(F + 4 * ct + 2 * j, 2)}, {v(F + 4 * ct + 2 * j, 2)}, {v(T, 2)}')
        WG = lambda f: (162 if (f % 10) < 5 else 2) + 4 * (f % 5)
        frd = lambda f: [f'ds_read_b64_tr_b16 {v(WG(f) + 2 * e, 2)}, v{vMSKW if f < 50 else vAWr} offset:{5120 * ((f // 5) % 10) + 1280 * e + 32 * (f % 5)}' for e in range(2)]
        for f in range(7):
            a(frd(f))
        self.stamp(7)
        self.poll(vFA, vFD, 0, -1)
        self.stamp(8)
        for ks in range(20):
            a(f'buffer_load_dwordx4 {v(82 + 4 * ks, 4)}, v{vHr}, s[{sWS}:{sWS + 3}], s{sHS} offen offset:{1024 * (ks & 3)} sc1')
            if ks & 3 == 3:
                a(f's_add_u32 s{sHS}, s{sHS}, 4096')
        a('s_cmp_eq_u32 s2, 0', 's_cbranch_scc0 L_NOEP', f's_cmp_eq_u32 s{sW}, 4', 's_cbranch_scc0 L_NOEP',
          's_waitcnt vmcnt(0)', f's_mov_b32 s{sT1}, {EP_OFF}')
        self.post(sT1, T)
        a('s_waitcnt vmcnt(0)', 'L_NOEP:')
        for f in range(100):
            ks, ct = divmod(f, 5)
            lg = 2 * (min(f + 7, 100) - f - 1)
            a(f's_waitcnt vmcnt({19 - ks}) lgkmcnt({lg})' if ct == 0 else f's_waitcnt lgkmcnt({lg})')
            a(f'v_mfma_f32_16x16x32_bf16 {v(F + 4 * ct, 4)}, {v(WG(f), 4)}, {v(82 + 4 * ks, 4)}, {v(F + 4 * ct, 4)}')
            if f + 7 < 100:
                a(frd(f + 7))
        a('s_nop 7')
        for ct in range(5):
            a(self.cvt(F + 4 * ct, F + 4 * ct, 2))
            a(f'buffer_store_dwordx2 {v(F + 4 * ct, 2)}, v{vOut}, s[{sOUT}:{sOUT + 3}], 0 offen offset:{32 * ct}')
        self.stamp(9)

    def build(self):
        a = self.a
        self.prologue()
        self.role_a()
        self.role_b()
        a('L_FIN:')
        self.dump_stamps()
        a('L_END:', 's_endpgm')
        body = a.text()
        hdr = open('parallel_sum__mha_block__dense_activation_relu__prompt.s.ref').read().split('; Override launch')[0]
        txt = hdr + f'''; @launch grid=(256,1,1) block=(512,1,1) lds={LDS_TOTAL}
.amdgcn_target "amdgcn-amd-amdhsa--gfx950"
.text
.globl {KNAME}
.p2align 8
.type {KNAME},@function
{KNAME}:
''' + body + f'''.section .rodata,"a"
.p2align 6
.amdhsa_kernel {KNAME}
  .amdhsa_next_free_vgpr 256
  .amdhsa_next_free_sgpr 102
  .amdhsa_accum_offset 256
  .amdhsa_group_segment_fixed_size 0
  .amdhsa_kernarg_size 72
  .amdhsa_user_sgpr_count 2
  .amdhsa_user_sgpr_kernarg_segment_ptr 1
  .amdhsa_system_sgpr_workgroup_id_x 1
  .amdhsa_float_denorm_mode_32 3
.end_amdhsa_kernel
'''
        return txt


if __name__ == '__main__':
    import argparse
    ap = argparse.ArgumentParser()
    ap.add_argument('-o', default='k.s')
    ap.add_argument('--stamps', action='store_true')
    ap.add_argument('--fb', action='store_true')
    args = ap.parse_args()
    g = Gen(stamps=args.stamps, force_fb=args.fb)
    txt = g.build()
    open(args.o, 'w').write(txt)
    pr = check(g.a.lines)
    hard = [p for soft, p in pr if not soft]
    print(f'{len(g.a.lines)} lines; hazards hard {len(hard)} soft {len(pr) - len(hard)}')
    for p in hard[:40]:
        print('  ', p)
```

```python
import sys
import math
from asmlib import Asm, v, s, weave, spread, check

KNAME = 'parallel_sum__mha_block__dense_activation_relu__prompt_kernel'

REC = 2688
KV_OFF = 0
H_OFF = 0x600000
O_OFF = 0xD00000
FL_OFF = 0x1000000
FKV = FL_OFF
FH = FL_OFF + 0x4000
FO = FL_OFF + 0x6000
EP_OFF = FL_OFF + 0x8000
ST_OFF = FL_OFF + 0x10000
WS_SIZE = 0x1100000
OOB = 0x80000000

SLOT = 49152
WIMG_A = 32768
WIMG_B = 41984
STAT = 147456
L_Q = STAT
L_QR = L_Q + 8192
L_INIT = STAT + 10240
L_M = L_INIT
L_ONES = L_INIT + 1024
L_CNT = L_INIT + 1280
L_SSQ = L_INIT + 1536
L_SUM = L_SSQ + 1024
L_CSP = L_SUM + 1024
LDS_TOTAL = 163840
RING = 25600
L_OX = 102400
L_CSF = 16384
L_VSCR = 0

CSCALE = (20 ** -0.5) * math.log2(math.e)
DELTA = 72.0


def f2u(x):
    import struct
    return struct.unpack('<I', struct.pack('<f', x))[0]


sX, sWA, sWB, sWS, sOUT, sW2 = 24, 28, 32, 36, 40, 44
sW, sH, sB, sKQ = 48, 49, 50, 51
sSIG, sCNT, sMSL, sXB, sSTA, sSTB = 52, 53, 54, 55, 56, 57
sT0, sT1, sT2, sT3, sT4, sT5 = 58, 59, 60, 61, 62, 63
sTAG = 64
sHI = 66
sRSL, sDLT = 67, 68
sM0X, sM0W = 69, 70
sMSK = 72
sMSK2 = 74
sBAR = 76
sMODE, sPUB = 77, 78
sBLK, sKC, sKN, sKB = 79, 80, 81, 82
sTO = 83
sDEL = 84
sHS, sHE = 85, 86
sDS = 87
sG0 = 88
sST = 90

vL = 1
O_ = lambda t: 2 + 12 * t
KV_ = lambda st: 102 + 14 * st
ACC = lambda tu, u: 130 + 32 * tu + 16 * u
FR = lambda st: 194 + 16 * st
Q_ = lambda t: 130 + 6 * t
S_ = lambda p: 178 + 16 * p
vAX, vAW0, vAW1 = 226, 230, 234
vDX, vDW = 238, 242
vQ0, vQ1 = 244, 245
vT = 246
vMSKW = 254
vE = 253
vST = 255
vCS = lambda u: 102 + 4 * u
vONE = 110


class Gen:
    def __init__(self, stamps=False, stop=None, force_fb=False, opt=()):
        self.a = Asm()
        self.stamps = stamps
        self.stop = stop
        self.force_fb = force_fb
        self.nst = 0
        self.opt = set(opt)

    def stamp(self, idx, dyn=None):
        if not self.stamps:
            return
        a = self.a
        a(f's_memtime s[{sST}:{sST + 1}]', 's_waitcnt lgkmcnt(0)')
        if dyn is None:
            a(f'v_writelane_b32 v{vST}, s{sST}, {idx}')
        else:
            a(f's_add_u32 m0, s{dyn}, {idx}', 's_nop 0', f'v_writelane_b32 v{vST}, s{sST}, m0')

    def dump_stamps(self):
        if not self.stamps:
            return
        a = self.a
        a(f's_lshl_b32 s{sT0}, s2, 3', f's_add_u32 s{sT0}, s{sT0}, s{sW}', f's_lshl_b32 s{sT0}, s{sT0}, 8',
          f's_add_u32 s{sT0}, s{sT0}, {ST_OFF}', 's_mov_b64 exec, -1')
        a(f's_memrealtime s[{sST}:{sST + 1}]', 's_waitcnt lgkmcnt(0)', f'v_writelane_b32 v{vST}, s{sST}, 63',
          f'v_lshlrev_b32 v{vT}, 2, v{vL}', f'buffer_store_dword v{vST}, v{vT}, s[{sWS}:{sWS + 3}], s{sT0} offen', 's_waitcnt vmcnt(0)')

    @staticmethod
    def zero16(r, z=None):
        z = vCS(0) if z is None else z
        return f'v_mfma_f32_32x32x8_bf16 {v(r, 16)}, {v(z, 2)}, {v(z, 2)}, 0'

    def srd(self, d, p, n):
        self.a(f's_mov_b32 s{d}, s{p}', f's_mov_b32 s{d + 1}, s{p + 1}', f's_mov_b32 s{d + 2}, {n}', f's_mov_b32 s{d + 3}, 0x20000')

    def softbar(self, off, vt):
        a = self.a
        lp, dn = a.lab('SB'), a.lab('SBD')
        a(f's_add_u32 s{sBAR}, s{sBAR}, 4', 's_mov_b64 exec, 1', f'v_mov_b32 v{vt}, {L_CNT + off}', f'v_mov_b32 v{vt + 1}, 1',
          f'ds_add_u32 v{vt}, v{vt + 1}', f's_mov_b32 s{sTO}, 0x400000')
        a(f'{lp}:', f'ds_read_b32 v{vt + 1}, v{vt}', 's_waitcnt lgkmcnt(0)', f'v_readfirstlane_b32 s{sT0}, v{vt + 1}', 's_nop 0',
          f's_cmp_ge_u32 s{sT0}, s{sBAR}', f's_cbranch_scc1 {dn}',
          f's_sub_u32 s{sTO}, s{sTO}, 1', f's_cmp_eq_u32 s{sTO}, 0', 's_cbranch_scc1 L_END', f's_branch {lp}')
        a(f'{dn}:', 's_mov_b64 exec, -1')

    def poll(self, vaddr, vd, soff, want):
        a = self.a
        lp, dn = a.lab('PL'), a.lab('PLD')
        a(f's_mov_b32 s{sTO}, 0x20000')
        a(f'{lp}:', f'buffer_load_dwordx2 {v(vd, 2)}, v{vaddr}, s[{sWS}:{sWS + 3}], {soff} offen sc1', 's_waitcnt vmcnt(0)',
          f'v_cmp_eq_u64 vcc, s[{sTAG}:{sTAG + 1}], {v(vd, 2)}', 's_nop 1',
          f's_and_b32 s{sT0}, vcc_lo, {want}', f's_cmp_eq_u32 s{sT0}, {want}', f's_cbranch_scc1 {dn}',
          f's_sub_u32 s{sTO}, s{sTO}, 1', f's_cmp_eq_u32 s{sTO}, 0', 's_cbranch_scc1 L_END', 's_sleep 2', f's_branch {lp}')
        a(f'{dn}:')

    def post(self, soff, vt):
        self.a('s_mov_b64 exec, 1', f'v_mov_b32 v{vt}, s{sTAG}', f'v_mov_b32 v{vt + 1}, s{sTAG + 1}', f'v_mov_b32 v{vt + 2}, 0',
               f'buffer_store_dwordx2 {v(vt, 2)}, v{vt + 2}, s[{sWS}:{sWS + 3}], s{soff} offen sc1', 's_mov_b64 exec, -1')

    def dma_group(self):
        x = [f'buffer_load_dwordx4 v{vDX + i}, s[{sX}:{sX + 3}], s{sT0} offen offset:{1024 * i} lds' for i in range(4)]
        return [
            [f's_lshl_b32 s{sT0}, s{sSIG}, 7', f's_add_u32 m0, s{sMSL}, s{sM0X}', f's_add_u32 s{sT0}, s{sT0}, s{sXB}', x[0]],
            [x[1]], [x[2]], [x[3]],
            [f's_add_u32 m0, s{sMSL}, s{sM0W}', f's_mul_i32 s{sT1}, s{sSIG}, s{sSTA}',
             f'buffer_load_dwordx4 v{vDW}, s[{sWA}:{sWA + 3}], s{sT1} offen lds'],
            [f's_mul_i32 s{sT2}, s{sSIG}, s{sSTB}', f'buffer_load_dwordx4 v{vDW + 1}, s[{sWB}:{sWB + 3}], s{sT2} offen offset:1024 lds'],
            [f's_add_u32 s{sSIG}, s{sSIG}, 1', f's_cmp_eq_u32 s{sSIG}, 10', f's_cselect_b32 s{sSIG}, 0, s{sSIG}',
             f's_add_u32 s{sMSL}, s{sMSL}, {SLOT}', f's_cmp_eq_u32 s{sMSL}, {3 * SLOT}', f's_cselect_b32 s{sMSL}, 0, s{sMSL}'],
        ]

    def prologue(self):
        a = self.a
        T = vT
        a('s_cmp_ge_u32 s2, 0x100', 's_cbranch_scc1 L_END')
        a('s_load_dwordx8 s[4:11], s[0:1], 0', 's_load_dwordx4 s[12:15], s[0:1], 32', 's_load_dwordx4 s[16:19], s[0:1], 48',
          's_load_dwordx2 s[20:21], s[0:1], 64')
        if self.stamps:
            a(f's_memtime s[{sST + 4}:{sST + 5}]', f's_memrealtime s[{sST + 6}:{sST + 7}]')
        a(f'v_lshrrev_b32 v{T}, 6, v0', f'v_and_b32 v{vL}, 63, v0')
        a(f's_and_b32 s{sT0}, s2, 7', f's_lshr_b32 s{sT1}, s2, 3')
        a(f'v_readfirstlane_b32 s{sW}, v{T}')
        a(f's_lshr_b32 s{sH}, s{sT0}, 1', f's_lshl_b32 s{sH}, s{sH}, 3', f's_and_b32 s{sT2}, s{sT1}, 7', f's_or_b32 s{sH}, s{sH}, s{sT2}')
        a(f's_and_b32 s{sB}, s{sT0}, 1', f's_lshl_b32 s{sB}, s{sB}, 2', f's_lshr_b32 s{sT1}, s{sT1}, 3', f's_or_b32 s{sB}, s{sB}, s{sT1}')
        a(f's_mul_i32 s{sT1}, s{sT1}, 5', f's_add_u32 s{sT1}, s{sT1}, 1', f's_lshr_b32 s{sT1}, s{sT1}, 1', f's_add_u32 s{sSIG}, s{sT1}, s{sT2}',
          f's_cmp_ge_u32 s{sSIG}, 10', f's_cselect_b32 s{sT1}, 10, 0', f's_sub_u32 s{sSIG}, s{sSIG}, s{sT1}')
        if 'norot' in self.opt:
            a(f's_mov_b32 s{sSIG}, 0')
        if 'rot2' in self.opt:
            a(f's_xor_b32 s{sSIG}, s{sH}, s{sB}', f's_and_b32 s{sSIG}, s{sSIG}, 1', f's_mul_i32 s{sSIG}, s{sSIG}, 5')
        if 'rot4' in self.opt:
            a(f's_add_u32 s{sSIG}, s{sH}, s{sB}', f's_and_b32 s{sSIG}, s{sSIG}, 3', f's_mul_i32 s{sSIG}, s{sSIG}, 5', f's_lshr_b32 s{sSIG}, s{sSIG}, 1')
        a(f's_and_b32 s{sKQ}, s{sW}, 3')
        a(f'v_lshrrev_b32 v{T}, 3, v{vL}', f'v_mul_u32_u24 v{T}, 1280, v{T}',
          f'v_and_b32 v{T + 1}, 7, v{vL}', f'v_lshrrev_b32 v{T + 2}, 4, v{vL}', f'v_xor_b32 v{T + 1}, v{T + 1}, v{T + 2}',
          f'v_lshlrev_b32 v{T + 1}, 4, v{T + 1}', f'v_xor_b32 v{T + 2}, 64, v{T + 1}',
          f'v_add_u32 v{vDX}, v{T}, v{T + 1}', f'v_add_u32 v{T + 2}, v{T}, v{T + 2}',
          f'v_add_u32 v{vDX + 1}, 9216, v{T + 2}', f'v_add_u32 v{vDX + 2}, 18432, v{vDX}', f'v_add_u32 v{vDX + 3}, 27648, v{T + 2}')
        a(f's_lshl_b32 s{sXB}, s{sB}, 3', f's_add_u32 s{sXB}, s{sXB}, s{sW}', f's_mul_i32 s{sXB}, s{sXB}, {32 * 1280}')
        a(f's_lshl_b32 s{sM0X}, s{sW}, 12', f's_lshl_b32 s{sM0W}, s{sW}, 11', f's_add_u32 s{sM0W}, s{sM0W}, {WIMG_A}', f's_mov_b32 s{sMSL}, 0')
        a(f's_lshr_b32 s{sG0}, s{sH}, 2', f's_mul_i32 s{sG0}, s{sG0}, 27', f's_and_b32 s{sT0}, s{sH}, 3', f's_mul_i32 s{sT1}, s{sT0}, 7',
          f's_add_u32 s{sG0}, s{sG0}, s{sT1}')
        tblA_sec = sum(x << (2 * i) for i, x in enumerate([0, 0, 1, 1, 0, 1, 2, 2, 2]))
        tblA_off = sum(x << (3 * i) for i, x in enumerate([0, 2, 0, 2, 4, 4, 0, 2, 3]))
        tblB7 = sum((2 * x) << (4 * i) for i, x in enumerate([0, 1, 2, 3, 4, 5, 6]))
        tblB6 = sum((2 * x) << (4 * i) for i, x in enumerate([0, 1, 2, 3, 4, 5, 5]))
        a(f's_cmp_eq_u32 s{sT0}, 3', f's_cselect_b32 s{sMSK}, {tblB6}, {tblB7}')
        a(f's_mul_i32 s{sMSK + 1}, s{sH}, 40', f's_lshl_b32 s{sMSK2}, s{sG0}, 4')
        for e in range(2):
            st = sSTA + e
            a(f's_lshl_b32 s{sT0}, s{sW}, 1', f's_add_u32 s{sT0}, s{sT0}, {e}', f's_cmp_lt_u32 s{sT0}, 9',
              f's_cselect_b32 s{sT1}, 0, 9', f's_cselect_b32 s{sT2}, 7282, 9363', f's_cselect_b32 s{sT3}, 9, 7',
              f's_cselect_b32 s{sT4}, {tblA_sec}, 0', f's_cselect_b32 s{sT5}, {tblA_off}, s{sMSK}',
              f's_cselect_b32 s{st}, 3840, 3456', f's_cselect_b32 s{sDLT}, 3, 4', f's_cselect_b32 s{sRSL}, s{sMSK + 1}, s{sMSK2}',
              f's_sub_u32 s{sT0}, s{sT0}, s{sT1}', f's_lshl_b32 s{sT0}, s{sT0}, 6')
            a(f'v_add_u32 v{T}, s{sT0}, v{vL}',
              f'v_mul_u32_u24 v{T + 1}, s{sT2}, v{T}', f'v_lshrrev_b32 v{T + 1}, 16, v{T + 1}',
              f'v_mul_u32_u24 v{T + 2}, s{sT3}, v{T + 1}', f'v_sub_u32 v{T}, v{T}, v{T + 2}',
              f'v_and_b32 v{T + 2}, 3, v{T + 1}', f'v_bfe_u32 v{T + 3}, v{T + 1}, 2, 2', f'v_and_b32 v{T + 1}, 0x30, v{T + 1}',
              f'v_lshl_add_u32 v{T + 1}, v{T + 2}, 2, v{T + 1}', f'v_add_u32 v{T + 1}, v{T + 1}, v{T + 3}',
              f'v_mul_u32_u24 v{T + 1}, s{st}, v{T + 1}',
              f'v_lshlrev_b32 v{T + 2}, 1, v{T}', f'v_lshrrev_b32 v{T + 2}, v{T + 2}, s{sT4}', f'v_and_b32 v{T + 2}, 3, v{T + 2}',
              f'v_mul_u32_u24 v{T + 2}, 1280, v{T + 2}',
              f'v_mul_u32_u24 v{T}, s{sDLT}, v{T}', f'v_lshrrev_b32 v{T}, v{T}, s{sT5}', f'v_bfe_u32 v{T}, v{T}, 0, s{sDLT}',
              f'v_lshl_add_u32 v{T}, v{T}, 3, v{T + 1}', f'v_add3_u32 v{vDW + e}, v{T}, v{T + 2}, s{sRSL}')
            a(f's_lshl_b32 s{st}, s{st}, 6')
        a('s_waitcnt lgkmcnt(0)')
        if self.stamps:
            a(f'v_mov_b32 v{vST}, 0', f'v_writelane_b32 v{vST}, s{sST + 4}, 0', f'v_writelane_b32 v{vST}, s{sST + 6}, 62')
            self.stamp(1)
        self.srd(sX, 4, 2621440)
        a(f's_cmp_lt_u32 s{sW}, 5', f's_cselect_b32 s{sWA}, s6, s12', f's_cselect_b32 s{sWA + 1}, s7, s13',
          f's_cselect_b32 s{sWA + 2}, {640 * 3840}, {640 * 3456}', f's_mov_b32 s{sWA + 3}, 0x20000')
        a(f's_cmp_lt_u32 s{sW}, 4', f's_cselect_b32 s{sWB}, s6, s12', f's_cselect_b32 s{sWB + 1}, s7, s13',
          f's_cselect_b32 s{sWB + 2}, {640 * 3840 + 1024}, {640 * 3456 + 1024}', f's_mov_b32 s{sWB + 3}, 0x20000',
          f's_sub_u32 s{sWB}, s{sWB}, 1024', f's_subb_u32 s{sWB + 1}, s{sWB + 1}, 0')
        self.srd(sWS, 20, WS_SIZE)
        a(self.dma_group())
        a('s_barrier')
        a(self.dma_group())
        self.stamp(2)
        a(f'v_mov_b32 v{T}, {EP_OFF}', f'buffer_load_dword v{vE}, v{T}, s[{sWS}:{sWS + 3}], 0 offen sc1')
        self.srd(sOUT, 16, 2621440)
        self.srd(sW2, 14, 1728 * 1280)
        a(f's_mov_b32 s{sHI}, 0xffff0000', f's_mov_b32 s{sRSL}, 0', f's_mov_b32 s{sCNT}, 10', f's_mov_b32 s{sBAR}, 0',
          f's_mov_b32 s{sMODE}, 0', f's_mov_b32 s{sPUB}, 0', f's_mov_b32 s{sDEL}, {f2u(DELTA)}')
        a(f'v_lshlrev_b32 v{T}, 2, v0', f'v_mov_b32 v{T + 2}, 0xff800000', f'v_mov_b32 v{T + 3}, 0x3f803f80',
          f'v_cmp_le_u32 vcc, 1024, v{T}', 's_nop 0', f'v_min_u32 v{T + 1}, 1532, v{T}',
          f'v_cndmask_b32 v{T + 2}, v{T + 2}, v{T + 3}, vcc', f'v_cmp_gt_u32 vcc, 1280, v{T}', f'v_add_u32 v{T + 1}, {L_INIT}, v{T + 1}', 's_nop 0',
          f'v_cndmask_b32 v{T + 2}, 0, v{T + 2}, vcc', f'ds_write_b32 v{T + 1}, v{T + 2}')
        a(f'v_and_b32 v{T}, 31, v{vL}', f'v_lshrrev_b32 v{T + 1}, 5, v{vL}', f'v_bfe_u32 v{T + 2}, v{vL}, 1, 3',
          f'v_xor_b32 v{T + 1}, v{T + 1}, v{T + 2}', f'v_lshlrev_b32 v{T + 1}, 4, v{T + 1}', f'v_lshl_add_u32 v{T}, v{T}, 7, v{T + 1}',
          f's_lshl_b32 s{sT0}, s{sKQ}, 13', f'v_add_u32 v{T}, s{sT0}, v{T}')
        for t in range(4):
            a(f's_add_u32 s{sT0}, s{sKQ}, {t}', f's_and_b32 s{sT0}, s{sT0}, 3', f's_lshl_b32 s{sT0}, s{sT0}, 5', f'v_xor_b32 v{vAX + t}, s{sT0}, v{T}')
        a([f'v_mov_b32 v{r}, 0' for r in list(range(vCS(0), vCS(0) + 8)) + [vQ0, vQ1]])
        a([self.zero16(r) for r in [ACC(0, 0), ACC(0, 1), ACC(1, 0), ACC(1, 1), FR(1)]])
        a(f'v_mov_b32 v{vONE}, 0x3f803f80', f'v_mov_b32 v{vONE + 1}, 0x3f803f80')
        a(f'v_lshrrev_b32 v{T}, 5, v{vL}', f'v_bfe_u32 v{T + 1}, v{vL}, 2, 2', f'v_lshlrev_b32 v{T}, 1, v{T}', f'v_lshl_add_u32 v{T}, v{T + 1}, 2, v{T}',
          f'v_bfe_u32 v{T + 1}, v{vL}, 4, 1', f'v_and_b32 v{T + 2}, 3, v{vL}', f'v_lshl_add_u32 v{T + 1}, v{T + 1}, 2, v{T + 2}',
          f'v_lshlrev_b32 v{T + 1}, 2, v{T + 1}')
        a(f's_cmp_ge_u32 s{sW}, 4', 's_cbranch_scc1 L_B')

    def w_addr(self, typ):
        a = self.a
        T = vT
        pitch, img = (144, WIMG_A) if typ == 'a' else (112, WIMG_B)
        t0, t1 = (0x76543210, 0x39765240) if typ == 'a' else (0x75643120, 0x00543120)
        a(f'v_mul_u32_u24 v{T}, {pitch}, v{T}', f's_mov_b32 s{sT0}, {t0}', f's_mov_b32 s{sT1}, {t1}',
          f'v_lshrrev_b32 v{T + 2}, v{T + 1}, s{sT0}', f'v_and_b32 v{T + 2}, 15, v{T + 2}', f'v_lshl_add_u32 v{T + 2}, v{T + 2}, 3, v{T}',
          f'v_lshrrev_b32 v{T + 3}, v{T + 1}, s{sT1}', f'v_and_b32 v{T + 3}, 15, v{T + 3}', f'v_lshl_add_u32 v{T + 3}, v{T + 3}, 3, v{T}')
        if typ == 'b':
            a(f'v_cmp_gt_u32 vcc, 24, v{T + 1}', f'v_lshrrev_b32 v{T + 4}, 5, v{vL}', f'v_lshlrev_b32 v{T + 4}, 5, v{T + 4}',
              f'v_sub_u32 v{T + 4}, {L_ONES + 48}, v{T + 4}', f'v_cndmask_b32 v{vMSKW}, 0, -1, vcc')
        for t in range(4):
            a(f's_add_u32 s{sT0}, s{sKQ}, {t}', f's_and_b32 s{sT0}, s{sT0}, 3', f's_mul_i32 s{sT0}, s{sT0}, {16 * pitch}',
              f's_add_u32 s{sT0}, s{sT0}, {img}', f's_add_u32 s{sT1}, s{sT0}, 64',
              f'v_add_u32 v{vAW0 + t}, s{sT0}, v{T + 2}', f'v_add_u32 v{vAW1 + t}, s{sT1}, v{T + 3}')
            if typ == 'b':
                a(f'v_cndmask_b32 v{vAW1 + t}, v{T + 4}, v{vAW1 + t}, vcc')

    def p1_reads(self, typ, tau):
        pitch = 144 if typ == 'a' else 112
        f = FR(tau & 1)
        return [f'ds_read_b128 {v(f, 4)}, v{vAX + tau}',
                f'ds_read_b64_tr_b16 {v(f + 8, 2)}, v{vAW0 + tau}', f'ds_read_b64_tr_b16 {v(f + 10, 2)}, v{vAW0 + tau} offset:{pitch}',
                f'ds_read_b64_tr_b16 {v(f + 12, 2)}, v{vAW1 + tau}', f'ds_read_b64_tr_b16 {v(f + 14, 2)}, v{vAW1 + tau} offset:{pitch}',
                f'ds_read_b128 {v(f + 4, 4)}, v{vAX + tau} offset:4096']

    def p1_group(self, typ, st, colsum, reads, extra):
        f = FR(st)
        m = [f'v_mfma_f32_32x32x16_bf16 {v(ACC(tu, u), 16)}, {v(f + 8 + 4 * u, 4)}, {v(f + 4 * tu, 4)}, {v(ACC(tu, u), 16)}'
             for tu, u in ((0, 0), (0, 1), (1, 0), (1, 1))]
        xs = f + (0 if typ == 'a' else 4)
        q = []
        for i in range(4):
            t0, t1 = vT + 2 * (i & 1), vT + 2 * (i & 1) + 1
            q.append([f'v_lshlrev_b32 v{t0}, 16, v{xs + i}', f'v_and_b32 v{t1}, s{sHI}, v{xs + i}',
                      f'v_fmac_f32 v{vQ0}, v{t0}, v{t0}', f'v_fmac_f32 v{vQ1}, v{t1}, v{t1}'])
        cs = [[], [], [], []]
        if colsum:
            c = lambda u, hf: f'v_mfma_f32_4x4x4_16b_bf16 {v(vCS(u), 4)}, {v(vONE, 2)}, {v(f + 8 + 4 * u + 2 * hf, 2)}, {v(vCS(u), 4)}'
            cs = [[c(0, 0)], [c(1, 0)], [c(0, 1)], [c(1, 1)]]
        out = []
        nr = len(reads)
        ne = len(extra)
        for i in range(4):
            out.append(m[i])
            out += reads[(i * nr) // 3:((i + 1) * nr) // 3] if i < 3 else []
            for x in extra[(i * ne) // 4:((i + 1) * ne) // 4]:
                out += x if isinstance(x, list) else [x]
            out += q[i]
            out += cs[i]
        return out

    def p1_loop(self, typ):
        a = self.a
        lp = f'L_P1{typ}'
        upd = [f's_add_u32 s{sT3}, s{sRSL}, {SLOT}', f's_cmp_eq_u32 s{sT3}, {3 * SLOT}', f's_cselect_b32 s{sT3}, 0, s{sT3}',
               f's_sub_u32 s{sDLT}, s{sT3}, s{sRSL}', f's_mov_b32 s{sRSL}, s{sT3}']
        upd += [f'v_add_u32 v{vAX + t}, s{sDLT}, v{vAX + t}' for t in range(4)]
        upd += [f'v_add_u32 v{vAW0 + t}, s{sDLT}, v{vAW0 + t}' for t in range(4)]
        if typ == 'a':
            upd += [f'v_add_u32 v{vAW1 + t}, s{sDLT}, v{vAW1 + t}' for t in range(4)]
        else:
            upd += [f'v_and_b32 v{vT + 4}, s{sDLT}, v{vMSKW}'] + [f'v_add_u32 v{vAW1 + t}, v{vT + 4}, v{vAW1 + t}' for t in range(4)]
        off = [f's_cmp_le_u32 s{sCNT}, 2', f's_cselect_b32 s{sX + 2}, 0, s{sX + 2}', f's_cselect_b32 s{sWA + 2}, 0, s{sWA + 2}',
               f's_cselect_b32 s{sWB + 2}, 0, s{sWB + 2}']
        a('s_waitcnt vmcnt(0) lgkmcnt(0)' if False else 's_waitcnt vmcnt(7) lgkmcnt(0)')
        a(f's_branch {lp}_in')
        a('.p2align 3')
        a(f'{lp}:', 's_waitcnt vmcnt(6) lgkmcnt(0)', f'{lp}_in:', 's_barrier')
        self.stamp(19, dyn=sCNT)
        a(self.p1_reads(typ, 0))
        a(off)
        a(self.p1_group(typ, 1, False, [], self.dma_group()))
        a('s_waitcnt lgkmcnt(0)')
        a(self.p1_group(typ, 0, True, self.p1_reads(typ, 1), []))
        a('s_waitcnt lgkmcnt(0)')
        a(self.p1_group(typ, 1, False, self.p1_reads(typ, 2), []))
        a('s_waitcnt lgkmcnt(0)')
        g = self.p1_group(typ, 0, False, self.p1_reads(typ, 3), [])
        a(g)
        a(upd)
        a(f's_sub_u32 s{sCNT}, s{sCNT}, 1', f's_cmp_lg_u32 s{sCNT}, 0', f's_cbranch_scc1 {lp}')
        a('s_waitcnt lgkmcnt(0)')
        a(self.p1_group(typ, 1, False, [], []))
        self.stamp(4)
        T = vT
        tu = 0 if typ == 'a' else 1
        a(f'v_add_f32 v{vQ0}, v{vQ0}, v{vQ1}', f'v_and_b32 v{T + 4}, 31, v{vL}', f'v_lshlrev_b32 v{T + 4}, 2, v{T + 4}',
          f'v_mov_b32 v{vQ1}, v{vQ0}', f's_lshl_b32 s{sT0}, s{sKQ}, 8', f's_add_u32 s{sT0}, s{sT0}, {L_SSQ}', f'v_add_u32 v{T + 5}, s{sT0}, v{T + 4}',
          f's_lshl_b32 s{sT0}, s{sW}, 8', f's_add_u32 s{sT1}, s{sT0}, {L_CSP}', f'v_lshl_add_u32 v{T + 6}, v{vL}, 2, s{sT1}',
          f'v_permlane32_swap_b32 v{vQ0}, v{vQ1}', f'v_permlane32_swap_b32 v{vCS(0)}, v{vCS(1)}')
        a(f'v_add_f32 v{vQ0}, v{vQ0}, v{vQ1}', f'v_add_f32 v{vCS(0)}, v{vCS(0)}, v{vCS(1)}',
          f'ds_write_b32 v{T + 5}, v{vQ0} offset:{128 * tu}', f'ds_write_b32 v{T + 6}, v{vCS(0)}')
        a(f'v_readfirstlane_b32 s{sTAG}, v{vE}', f's_add_u32 s{sT0}, s{sT0}, {L_CSF}')
        if typ == 'b':
            a(f'ds_write_b32 v{T + 5}, v{ACC(0, 1) + 12} offset:1024', f'ds_write_b32 v{T + 5}, v{ACC(1, 1) + 12} offset:{1024 + 128}')
        a(f'v_lshlrev_b32 v{T + 6}, 2, v{vL}', f'v_lshrrev_b32 v{T + 4}, 5, v{vL}', f'v_lshl_add_u32 v{T + 4}, v{T + 4}, 4, s{sT0}',
          f'v_add_u32 v{T + 7}, s{sT0}, v{T + 6}', f'v_add_u32 v{T + 6}, {L_CSP + (0 if typ == "a" else 1024)}, v{T + 6}')
        a(f's_add_u32 s{sTAG}, s{sTAG}, 1', f's_not_b32 s{sTAG + 1}, s{sTAG}')
        a('s_waitcnt vmcnt(0) lgkmcnt(0)', 's_barrier')
        self.stamp(10)
        a(f'ds_read2st64_b32 {v(T, 2)}, v{T + 6} offset0:0 offset1:1', f'ds_read2st64_b32 {v(T + 2, 2)}, v{T + 6} offset0:2 offset1:3')
        for t in range(2):
            a(f'ds_read_b32 v{vAX + t}, v{T + 5} offset:{1024 + 128 * t}', f'ds_read_b32 v{vAX + 2 + t}, v{T + 5} offset:{128 * t}')
        a('s_waitcnt lgkmcnt(4)', f'v_pk_add_f32 {v(T, 2)}, {v(T, 2)}, {v(T + 2, 2)}', f'v_add_f32 v{T}, v{T}, v{T + 1}', f'ds_write_b32 v{T + 7}, v{T}')
        for u in range(2):
            for i in range(4):
                a(f'ds_read_b128 {v(FR(0) + 16 * u + 4 * i, 4)}, v{T + 4} offset:{128 * u + 32 * i}')

    def stats_math(self):
        a = self.a
        a('s_waitcnt lgkmcnt(8)', f's_mov_b32 s{sT0}, {f2u(1.0 / 640)}')
        for t in range(2):
            m, r = vAW0 + 2 * t, vAW1 + 2 * t
            a(f'v_mul_f32 v{m}, s{sT0}, v{vAX + t}', f'v_mul_f32 v{r}, s{sT0}, v{vAX + 2 + t}', f'v_fma_f32 v{r}, -v{m}, v{m}, v{r}',
              f'v_max_f32 v{r}, 0, v{r}', f'v_add_f32 v{r}, {f2u(1e-5)}, v{r}', f'v_rsq_f32 v{r}, v{r}')
        a('s_waitcnt lgkmcnt(0)')

    def fold(self, tu, u, i0, n, scale):
        out = []
        for i in range(i0, i0 + n, 2):
            d = ACC(tu, u) + i
            out.append(f'v_pk_fma_f32 {v(d, 2)}, {v(FR(0) + 16 * u + i, 2)}, {v(vAW0 + 2 * tu, 2)}, {v(d, 2)} op_sel_hi:[1,0,1] neg_lo:[0,1,0] neg_hi:[0,1,0]')
        for i in range(i0, i0 + n, 2):
            d = ACC(tu, u) + i
            out.append(f'v_pk_mul_f32 {v(d, 2)}, {v(d, 2)}, {v(scale, 2)} op_sel_hi:[1,0]')
        return out

    @staticmethod
    def cvt(d, src, n):
        return [f'v_cvt_pk_bf16_f32 v{d + i}, v{src + 2 * i}, v{src + 2 * i + 1}' for i in range(n)]

    def role_a(self):
        a = self.a
        T = vT
        self.w_addr('a')
        a([self.zero16(r) for r in (2, 18, 34, 50, 66, 82)], 's_nop 7', 's_nop 1', self.zero16(86))
        self.stamp(3)
        self.p1_loop('a')
        self.stats_math()
        vK, vV, vR, vIDX, vFA, vFD = 226, 227, 228, 229, 238, 240
        vSC = 242
        vWA = 250
        vTR, vCV = 239, 254
        a(f'v_and_b32 v{T}, 31, v{vL}', f'v_lshrrev_b32 v{T + 1}, 5, v{vL}', f'v_cmp_gt_u32 s[{sMSK}:{sMSK + 1}], 32, v{vL}',
          f'v_cmp_gt_u32 s[{sMSK2}:{sMSK2 + 1}], 20, v{T}', f'v_cmp_gt_u32 vcc, 21, v{T}',
          f'v_lshlrev_b32 v{vK}, 4, v{vL}', f'v_mul_u32_u24 v{T + 2}, 21, v{T + 1}', f'v_add_u32 v{T + 2}, v{T + 2}, v{T}',
          f'v_lshlrev_b32 v{T + 2}, 4, v{T + 2}', f'v_add_u32 v{T + 2}, 1024, v{T + 2}', f'v_mov_b32 v{T + 3}, {OOB}',
          f'v_cndmask_b32 v{vV}, v{T + 3}, v{T + 2}, vcc', f'v_min_u32 v{vR}, 32, v{vL}', f'v_lshlrev_b32 v{vR}, 3, v{vR}',
          f'v_add_u32 v{vR}, 2368, v{vR}', f'v_mov_b32 v{vIDX}, 0xdddddddd',
          f'v_cmp_eq_u32 vcc, 20, v{T}', f'v_mov_b32 v{T + 3}, 0x3f803f80', 's_nop 0', f'v_cndmask_b32 v{vCV}, 0, v{T + 3}, vcc')
        a(f's_mul_i32 s{sT0}, s{sKQ}, 2560', f'v_mul_u32_u24 v{T + 2}, 40, v{T}', f'v_add_u32 v{T + 2}, s{sT0}, v{T + 2}',
          f's_lshl_b32 s{sT1}, s{sKQ}, 9', f's_add_u32 s{sT1}, s{sT1}, {L_QR}', f'v_lshl_add_u32 v{T + 3}, v{T}, 3, s{sT1}',
          f'v_cndmask_b32 v{vWA}, v{T + 2}, v{T + 3}, s[{sMSK}:{sMSK + 1}]',
          f'v_add_u32 v{vWA + 1}, 8, v{T + 2}',
          f'v_lshl_add_u32 v{vWA + 2}, v{T + 1}, 3, v{T + 2}', f'v_add_u32 v{vWA + 2}, 16, v{vWA + 2}',
          f'v_add_u32 v{vWA + 3}, 32, v{T + 2}')
        a(f's_bitcmp1_b32 s{sH}, 0', f's_cselect_b32 s{sT1}, 0x04231, 0x43120',
          f'v_bfe_u32 v{T + 2}, v{vL}, 4, 1', f'v_and_b32 v{T + 3}, 3, v{vL}', f'v_lshl_add_u32 v{T + 2}, v{T + 2}, 2, v{T + 3}',
          f'v_lshlrev_b32 v{T + 2}, 2, v{T + 2}', f'v_lshrrev_b32 v{T + 2}, v{T + 2}, s{sT1}', f'v_and_b32 v{T + 2}, 15, v{T + 2}',
          f'v_bfe_u32 v{T + 3}, v{vL}, 2, 2', f'v_lshl_add_u32 v{T + 3}, v{T + 1}, 3, v{T + 3}', f'v_mul_u32_u24 v{T + 3}, 40, v{T + 3}',
          f'v_lshl_add_u32 v{T + 2}, v{T + 2}, 3, v{T + 3}', f'v_add_u32 v{vTR}, s{sT0}, v{T + 2}')
        a(f's_lshl_b32 s{sT1}, s{sKQ}, 11', f's_add_u32 s{sT1}, s{sT1}, {L_Q}', f'v_add_u32 v{vFA}, s{sT1}, v{vK}')
        a(f's_mul_i32 s{sKB}, s{sH}, {64 * REC}', f's_mul_i32 s{sT0}, s{sKQ}, {2 * REC}', f's_add_u32 s{sKB}, s{sKB}, s{sT0}',
          f's_mul_i32 s{sKC}, s{sB}, {8 * REC}', f's_add_u32 s{sKC}, s{sKC}, s{sKB}', f's_mov_b32 s{sT5}, {f2u(CSCALE)}')
        for tu in range(2):
            r = vAW1 + 2 * tu
            kv = KV_(tu)
            a(f'v_mul_f32 v{vSC}, s{sT5}, v{r}', 's_nop 0', f'v_cndmask_b32 v{vSC + 2}, v{r}, v{vSC}, s[{sMSK}:{sMSK + 1}]')
            a(self.fold(tu, 0, 0, 8, vSC), self.fold(tu, 0, 8, 8, r), self.fold(tu, 1, 0, 4, vSC + 2), self.fold(tu, 1, 4, 12, r))
            A0, A1 = ACC(tu, 0), ACC(tu, 1)
            a(self.cvt(A0, A0, 4), self.cvt(kv, A0 + 8, 4), self.cvt(A1, A1, 8))
            a(f'ds_write_b128 v{vFA}, {v(A0, 4)} offset:{1024 * tu}')
            if tu == 0:
                a(f'ds_write_b64 v{vWA}, {v(A1, 2)}')
            else:
                a(f'v_mov_b32 v{T}, 1280', f'v_mov_b32 v{T + 1}, 256', f'v_cndmask_b32 v{T}, v{T}, v{T + 1}, s[{sMSK}:{sMSK + 1}]',
                  f'v_add_u32 v{vWA}, v{vWA}, v{T}', f'ds_write_b64 v{vWA}, {v(A1, 2)}')
            a(f'ds_write_b64 v{vWA + 2}, {v(A1 + 4, 2)} offset:{1280 * tu}')
            a(f's_not_b64 exec, s[{sMSK}:{sMSK + 1}]', f'ds_write_b64 v{vWA + 1}, {v(A1 + 2, 2)} offset:{1280 * tu}',
              f'v_mov_b32 v{A1 + 2}, 0x3f803f80', f'v_mov_b32 v{A1 + 3}, 0x3f80',
              f's_mov_b64 exec, s[{sMSK}:{sMSK + 1}]', f'ds_write_b64 v{vWA + 3}, {v(A1 + 6, 2)} offset:{1280 * tu}', 's_mov_b64 exec, -1')
            a(f'v_mov_b32 v{kv + 12}, v{A1 + 2}', f'v_mov_b32 v{kv + 13}, v{A1 + 3}')
            for ss in range(2):
                for e in range(2):
                    a(f'ds_read_b64_tr_b16 {v(kv + 4 + 4 * ss + 2 * e, 2)}, v{vTR} offset:{1280 * tu + (16 * ss + 4 * e) * 40}')
            so = sKC if tu == 0 else sT0
            if tu == 1:
                a(f's_add_u32 s{sT0}, s{sKC}, {REC}')
            a(f'buffer_store_dwordx4 {v(kv, 4)}, v{vK}, s[{sWS}:{sWS + 3}], s{so} offen sc1',
              f'buffer_store_dwordx2 {v(kv + 12, 2)}, v{vR}, s[{sWS}:{sWS + 3}], s{so} offen sc1')
            a('s_waitcnt lgkmcnt(0)')
            a([f'v_cndmask_b32 v{kv + 4 + i}, v{vCV}, v{kv + 4 + i}, s[{sMSK2}:{sMSK2 + 1}]' for i in range(8)])
            a(f'buffer_store_dwordx4 {v(kv + 4, 4)}, v{vV}, s[{sWS}:{sWS + 3}], s{so} offen sc1',
              f'buffer_store_dwordx4 {v(kv + 8, 4)}, v{vV}, s[{sWS}:{sWS + 3}], s{so} offen offset:672 sc1')
        a('s_barrier')
        self.stamp(5)
        a('s_setprio 1')
        vPQ, vPM, vPO = 210, 214, 218
        a(f'v_and_b32 v{T}, 31, v{vL}')
        for j in range(4):
            a(f's_xor_b32 s{sT0}, s{sKQ}, {3 - j}',
              f's_lshl_b32 s{sT1}, s{sT0}, 11', f's_add_u32 s{sT1}, s{sT1}, {L_Q}', f'v_add_u32 v{vPQ + j}, s{sT1}, v{vK}',
              f's_lshl_b32 s{sT1}, s{sT0}, 9', f's_add_u32 s{sT1}, s{sT1}, {L_QR}', f'v_lshl_add_u32 v{T + 1}, v{T}, 3, s{sT1}',
              f'ds_read_b128 {v(Q_(2 * j), 4)}, v{vPQ + j}', f'ds_read_b128 {v(Q_(2 * j + 1), 4)}, v{vPQ + j} offset:1024',
              f'ds_read_b64 {v(Q_(2 * j) + 4, 2)}, v{T + 1}', f'ds_read_b64 {v(Q_(2 * j + 1) + 4, 2)}, v{T + 1} offset:256',
              f's_lshl_b32 s{sT1}, s{sT0}, 8', f's_add_u32 s{sT1}, s{sT1}, {L_M}', f'v_lshl_add_u32 v{vPM + j}, v{T}, 2, s{sT1}',
              )
        for j, x in enumerate((0, 2, 3)):
            a(f's_xor_b32 s{sT0}, s{sKQ}, {x}', f's_mul_i32 s{sT1}, s{sT0}, 12288', f's_add_u32 s{sT1}, s{sT1}, {L_OX}', f'v_add_u32 v{vPO + j}, s{sT1}, v{vK}')
        a(f's_lshl_b32 s{sT0}, s{sH}, 2', f's_add_u32 s{sT0}, s{sT0}, s{sKQ}', f's_lshl_b32 s{sT0}, s{sT0}, 7', f's_add_u32 s{sT0}, s{sT0}, {FKV}',
          f'v_and_b32 v{vFA}, 7, v{vL}', f'v_lshl_add_u32 v{vFA}, v{vFA}, 3, s{sT0}')
        a('s_waitcnt lgkmcnt(0)')
        a('L_REDO:')
        a(f's_not_b64 exec, s[{sMSK}:{sMSK + 1}]', [f'v_mov_b32 v{Q_(t) + 4 + i}, 0' for t in range(8) for i in range(2)], 's_mov_b64 exec, -1')
        a('L_PRE:')
        qk = lambda t: [f'v_mfma_f32_32x32x16_bf16 {v(S_(t & 1), 16)}, {v(KV_(0), 4)}, {v(Q_(t), 4)}, 0',
                        f'v_mfma_f32_32x32x8_bf16 {v(S_(t & 1), 16)}, {v(KV_(0) + 12, 2)}, {v(Q_(t) + 4, 2)}, {v(S_(t & 1), 16)}']
        a('s_nop 1', qk(0), qk(1), 's_nop 9')
        for t in range(8):
            Sx = S_(t & 1)
            mx = [f'v_max3_f32 v{T}, v{Sx}, v{Sx + 1}, v{Sx + 2}', f'v_max3_f32 v{T + 1}, v{Sx + 3}, v{Sx + 4}, v{Sx + 5}']
            mx += [f'v_max3_f32 v{T + (i & 1)}, v{T + (i & 1)}, v{Sx + 6 + 2 * i}, v{Sx + 7 + 2 * i}' for i in range(5)]
            mx += [f'v_max_f32 v{T + 2 + (t & 1)}, v{T}, v{T + 1}']
            a(mx)
            if t + 2 < 8:
                a(qk(t + 2))
            a(f'ds_max_f32 v{vPM + t // 2}, v{T + 2 + (t & 1)} offset:{128 * (t & 1)}')
            if t < 7:
                a('s_nop 1' if t + 2 < 8 else 's_nop 3')
        a(f's_cmp_eq_u32 s{sMODE}, 0', 's_cbranch_scc0 L_PRE_EXACT')
        a('s_waitcnt vmcnt(0)', f's_lshl_b32 s{sT1}, s{sH}, 2', f's_add_u32 s{sT1}, s{sT1}, s{sKQ}', f's_lshl_b32 s{sT1}, s{sT1}, 7',
          f's_lshl_b32 s{sT2}, s{sB}, 3', f's_add_u32 s{sT1}, s{sT1}, s{sT2}', f's_add_u32 s{sT1}, s{sT1}, {FKV}')
        self.post(sT1, T)
        a('L_PRE_DONE:')
        self.softbar(0, T)
        for t in range(8):
            a(f'ds_read_b32 v{S_(0) + t}, v{vPM + t // 2} offset:{128 * (t & 1)}')
        a('s_waitcnt lgkmcnt(0)', f's_not_b64 exec, s[{sMSK}:{sMSK + 1}]')
        for t in range(8):
            x, q = S_(0) + t, Q_(t) + 4
            a(f'v_sub_f32 v{x}, -v{x}, s{sDEL}' if False else f'v_add_f32 v{x}, s{sDEL}, v{x}',
              f'v_xor_b32 v{x}, 0x80000000, v{x}',
              f'v_and_b32 v{T}, s{sHI}, v{x}', f'v_sub_f32 v{x}, v{x}, v{T}',
              f'v_and_b32 v{T + 1}, s{sHI}, v{x}', f'v_sub_f32 v{x}, v{x}, v{T + 1}',
              f'v_lshrrev_b32 v{T}, 16, v{T}', f'v_or_b32 v{q}, v{T}, v{T + 1}', f'v_lshrrev_b32 v{q + 1}, 16, v{x}')
        a('s_mov_b64 exec, -1')
        a([f'v_mov_b32 v{S_(1) + 8 + i}, 0' for i in range(8)])
        a(f's_mov_b32 s{sBLK}, s{sB}', f's_mov_b32 s{sCNT}, 8')
        a(f'v_mfma_f32_32x32x16_bf16 {v(S_(0), 16)}, {v(KV_(0), 4)}, {v(Q_(0), 4)}, 0',
          f'v_mfma_f32_32x32x8_bf16 {v(S_(0), 16)}, {v(KV_(0) + 12, 2)}, {v(Q_(0) + 4, 2)}, {v(S_(0), 16)}', 's_nop 11')
        self.stamp(6)
        ld4 = lambda d, va, so, off=0: f'buffer_load_dwordx4 {v(d, 4)}, v{va}, s[{sWS}:{sWS + 3}], s{so} offen' + (f' offset:{off}' if off else '') + ' sc1'
        ld2 = lambda d, va, so, off=0: f'buffer_load_dwordx2 {v(d, 2)}, v{va}, s[{sWS}:{sWS + 3}], s{so} offen' + (f' offset:{off}' if off else '') + ' sc1'
        a('.p2align 3', 'L_ATT:')
        self.stamp(31, dyn=sCNT)
        for n in range(16):
            cur, oth = S_(n & 1), S_((n + 1) & 1)
            kp, kc, kn = KV_(((n - 1) % 16) // 8), KV_(n // 8), KV_(((n + 1) % 16) // 8)
            qn = Q_((n + 1) % 8)
            p2 = f'v_smfmac_f32_32x32x32_bf16 {v(O_((n - 1) % 8), 16)}, {v(kp + 8, 4)}, {v(oth + 8, 8)}, v{vIDX}'
            mm = f'v_mfma_f32_32x32x16_bf16 {v(oth, 16)}, {v(kn, 4)}, {v(qn, 4)}, 0'
            rr = f'v_mfma_f32_32x32x8_bf16 {v(oth, 16)}, {v(kn + 12, 2)}, {v(qn + 4, 2)}, {v(oth, 16)}'
            p1 = f'v_smfmac_f32_32x32x32_bf16 {v(O_(n % 8), 16)}, {v(kc + 4, 4)}, {v(cur, 8)}, v{vIDX}'
            ex = {1: [p2], 4: [mm], 7: [rr], 11: [p1]}
            if n == 0:
                ex[1] += [f's_add_u32 s{sT1}, s{sKC}, {REC}']
                ex[4] += [ld4(KV_(1) + 4, vV, sT1)]
                ex[7] += [ld4(KV_(1) + 8, vV, sT1, 672)]
                ex[11] += [f'buffer_load_dwordx2 {v(vFD, 2)}, v{vFA}, s[{sWS}:{sWS + 3}], 0 offen sc1']
            if n == 1:
                ex[1] += [f's_add_u32 s{sBLK}, s{sBLK}, 1']
                ex[4] += [f's_and_b32 s{sBLK}, s{sBLK}, 7']
                ex[11] += [f's_mul_i32 s{sKN}, s{sBLK}, {8 * REC}']
            if n == 2:
                ex[1] += [f's_add_u32 s{sKN}, s{sKN}, s{sKB}']
            if n == 7:
                ex[1] += ['s_waitcnt vmcnt(0)']
                ex[4] += [f'v_cmp_eq_u64 vcc, s[{sTAG}:{sTAG + 1}], {v(vFD, 2)}']
                ex[7] += [f's_bitcmp1_b32 vcc_lo, s{sBLK}', 's_cbranch_scc0 L_FLAGWAIT', 'L_FLAGOK:', ld4(KV_(0), vK, sKN)]
                ex[11] += [ld2(KV_(0) + 12, vR, sKN)]
            if n == 8:
                ex[4] += [ld4(KV_(0) + 4, vV, sKN)]
                ex[7] += [ld4(KV_(0) + 8, vV, sKN, 672)]
            if n == 15:
                ex[1] += ['s_waitcnt vmcnt(0)']
                ex[4] += [f's_mov_b32 s{sKC}, s{sKN}']
                ex[7] += [ld4(KV_(1), vK, sKN, REC)]
                ex[11] += [ld2(KV_(1) + 12, vR, sKN, REC - 2048) if False else f's_add_u32 s{sT1}, s{sKN}, {REC}', ld2(KV_(1) + 12, vR, sT1)]
                ex[13] = [f's_sub_u32 s{sCNT}, s{sCNT}, 1']
                ex[14] = [f's_cmp_lg_u32 s{sCNT}, 0']
            a(weave([f'v_exp_f32 v{cur + i}, v{cur + i}' for i in range(16)], ex))
        a('s_cbranch_scc1 L_ATT')
        a('s_nop 1', f'v_smfmac_f32_32x32x32_bf16 {v(O_(7), 16)}, {v(KV_(1) + 8, 4)}, {v(S_(1) + 8, 8)}, v{vIDX}')
        self.stamp(7)
        X = S_(0)
        for t in range(4):
            a([f'ds_write_b128 v{vPO}, {v(O_(t) + 4 * i, 4)} offset:{3072 * t + 1024 * i}' for i in range(3)])
        self.softbar(0, T)
        R1 = Q_(0) if False else O_(0)
        for t in range(4):
            a([f'ds_read_b128 {v(R1 + 12 * t + 4 * i, 4)}, v{vPO + 1} offset:{3072 * t + 1024 * i}' for i in range(3)])
        a('s_waitcnt lgkmcnt(6)')
        a([f'v_pk_add_f32 {v(O_(4) + 2 * i, 2)}, {v(O_(4) + 2 * i, 2)}, {v(R1 + 2 * i, 2)}' for i in range(12)])
        a('s_waitcnt lgkmcnt(0)')
        for t in range(2):
            a([f'ds_write_b128 v{vPO + 1}, {v(O_(4 + t) + 4 * i, 4)} offset:{3072 * t + 1024 * i}' for i in range(3)])
        a([f'v_pk_add_f32 {v(O_(6) + 2 * i, 2)}, {v(O_(6) + 2 * i, 2)}, {v(R1 + 24 + 2 * i, 2)}' for i in range(12)])
        self.softbar(0, T)
        for tt in range(2):
            a([f'ds_read_b128 {v(X + 12 * tt + 4 * i, 4)}, v{vPO + 2} offset:{3072 * tt + 1024 * i}' for i in range(3)])
        vOm, vOr = 210, 211
        a(f'v_bfe_u32 v{T}, v{vL}, 4, 1', f'v_mul_u32_u24 v{T}, 20480, v{T}', f'v_and_b32 v{T + 1}, 15, v{vL}', f'v_lshl_add_u32 v{T}, v{T + 1}, 4, v{T}',
          f'v_lshrrev_b32 v{T + 1}, 5, v{vL}', f'v_lshl_add_u32 v{vOm}, v{T + 1}, 8, v{T}', f'v_mov_b32 v{T + 1}, {OOB}',
          f'v_cndmask_b32 v{vOr}, v{T + 1}, v{T}, s[{sMSK}:{sMSK + 1}]')
        a(f's_lshl_b32 s{sT1}, s{sB}, 2', f's_add_u32 s{sT1}, s{sT1}, s{sKQ}', f's_mul_i32 s{sT2}, s{sT1}, {4 * 20480}', f's_add_u32 s{sT2}, s{sT2}, {O_OFF}',
          f's_mul_i32 s{sT3}, s{sH}, 640', f's_add_u32 s{sT2}, s{sT2}, s{sT3}',
          f's_bitcmp1_b32 s{sH}, 0', f's_cselect_b32 s{sT3}, 128, 0', f's_cselect_b32 s{sT4}, -120, 512',
          f's_add_u32 s{sT3}, s{sT2}, s{sT3}', f's_add_u32 s{sT4}, s{sT2}, s{sT4}',
          f's_lshl_b32 s{sT1}, s{sT1}, 8', f's_lshl_b32 s{sT2}, s{sH}, 3', f's_add_u32 s{sT1}, s{sT1}, s{sT2}', f's_add_u32 s{sKN}, s{sT1}, {FO}')
        a(f'v_mov_b32 v{T + 6}, 0', f'v_mov_b32 v{T + 7}, 0', f'v_mov_b32 v{vFD}, 0', f'v_mov_b32 v{vFD + 1}, 0', 's_waitcnt lgkmcnt(0)')
        a(f's_mov_b64 s[{sMSK2}:{sMSK2 + 1}], -1')
        for tt in range(2):
            Y, Oo = X + 12 * tt, O_(6 + tt)
            a([f'v_pk_add_f32 {v(Y + 2 * i, 2)}, {v(Y + 2 * i, 2)}, {v(Oo + 2 * i, 2)}' for i in range(6)])
            a(f'v_mov_b32 v{T}, v{Y + 8}', f'v_mov_b32 v{T + 1}, v{Y + 8}', 's_nop 1', f'v_permlane32_swap_b32 v{T}, v{T + 1}',
              f'v_rcp_f32 v{T + 2}, v{T + 1}', f'v_cmp_gt_f32 vcc, {f2u(2.0 ** 120)}, v{T + 1}')
            a([f'v_pk_fma_f32 {v(T + 6, 2)}, {v(Y + 2 * i, 2)}, {v(vFD, 2)}, {v(T + 6, 2)}' for i in range(6)])
            a(f's_and_b64 s[{sMSK2}:{sMSK2 + 1}], s[{sMSK2}:{sMSK2 + 1}], vcc', f'v_cmp_lt_f32 vcc, {f2u(2.0 ** -110)}, v{T + 1}')
            a([f'v_pk_mul_f32 {v(Y + 2 * i, 2)}, {v(Y + 2 * i, 2)}, {v(T + 2, 2)} op_sel_hi:[1,0]' for i in range(6)])
            a(f's_and_b64 s[{sMSK2}:{sMSK2 + 1}], s[{sMSK2}:{sMSK2 + 1}], vcc')
            a(self.cvt(Y, Y, 6))
        a(f'v_add_f32 v{T + 6}, v{T + 6}, v{T + 7}', f'v_cmp_eq_f32 vcc, 0, v{T + 6}', 's_nop 1',
          f's_and_b64 s[{sMSK2}:{sMSK2 + 1}], s[{sMSK2}:{sMSK2 + 1}], vcc')
        if self.force_fb:
            a(f's_cmp_eq_u32 s{sKQ}, 1', f's_cselect_b64 s[{sMSK2}:{sMSK2 + 1}], 0, s[{sMSK2}:{sMSK2 + 1}]')
        a(f's_cmp_eq_u64 s[{sMSK2}:{sMSK2 + 1}], -1', f's_cselect_b32 s{sT1}, 1, s{sMODE}',
          f's_cmp_eq_u32 s{sT1}, 0', 's_cbranch_scc1 L_BAD', f's_cmp_eq_u32 s{sPUB}, 0', 's_cbranch_scc0 L_PUBDONE')
        for tt in range(2):
            Y = X + 12 * tt
            a(f'buffer_store_dwordx4 {v(Y, 4)}, v{vOm}, s[{sWS}:{sWS + 3}], s{sT3} offen sc1',
              f'buffer_store_dwordx2 {v(Y + 4, 2)}, v{vOr}, s[{sWS}:{sWS + 3}], s{sT4} offen sc1')
            if tt == 0:
                a(f's_add_u32 s{sT3}, s{sT3}, {2 * 20480}', f's_add_u32 s{sT4}, s{sT4}, {2 * 20480}')
        a('s_waitcnt vmcnt(0)')
        self.post(sKN, T)
        a(f's_mov_b32 s{sPUB}, 1', 's_branch L_PUBDONE')
        a('L_BAD:', f'v_mov_b32 v{T}, {L_CNT + 8}', f'v_mov_b32 v{T + 1}, 1', f'ds_write_b32 v{T}, v{T + 1}')
        a('L_PUBDONE:')
        self.stamp(8)
        a(f's_cmp_eq_u32 s{sMODE}, 0', 's_cbranch_scc0 L_FIN')
        self.softbar(0, T)
        a(f'v_mov_b32 v{T}, {L_CNT + 8}', f'ds_read_b32 v{T + 1}, v{T}', 's_waitcnt lgkmcnt(0)', f'v_readfirstlane_b32 s{sT1}, v{T + 1}', 's_nop 0',
          f's_cmp_eq_u32 s{sT1}, 0', 's_cbranch_scc1 L_FIN')
        a(f's_mov_b32 s{sMODE}, 1', f's_mov_b32 s{sDEL}, 0', f'v_mov_b32 v{T}, 0xff800000', f'v_mov_b32 v{T + 1}, 0',
          f'ds_write_b32 v{vPM + 3}, v{T}', f'ds_write_b32 v{vPM + 3}, v{T} offset:128')
        a([f'v_mov_b32 v{r}, 0' for r in range(O_(0), O_(0) + 100)])
        self.softbar(0, T)
        a(f's_mov_b32 s{sCNT}, 0', f's_mov_b32 s{sT1}, s{sKB}', ld4(KV_(0), vK, sT1), ld2(KV_(0) + 12, vR, sT1), 's_waitcnt vmcnt(0)', 's_branch L_REDO')
        a('L_PRE_EXACT:', f's_add_u32 s{sCNT}, s{sCNT}, 1', f's_cmp_eq_u32 s{sCNT}, 16', 's_cbranch_scc1 L_PRE_LAST',
          f's_lshr_b32 s{sT1}, s{sCNT}, 1', f's_lshl_b32 s{sT1}, s{sT1}, 3', f's_and_b32 s{sT2}, s{sCNT}, 1', f's_add_u32 s{sT1}, s{sT1}, s{sT2}',
          f's_mul_i32 s{sT1}, s{sT1}, {REC}', f's_add_u32 s{sT1}, s{sT1}, s{sKB}',
          ld4(KV_(0), vK, sT1), ld2(KV_(0) + 12, vR, sT1), 's_waitcnt vmcnt(0)', 's_branch L_PRE')
        a('L_PRE_LAST:', f's_mul_i32 s{sKC}, s{sB}, {8 * REC}', f's_add_u32 s{sKC}, s{sKC}, s{sKB}', f's_add_u32 s{sT1}, s{sKC}, {REC}',
          ld4(KV_(0), vK, sKC), ld2(KV_(0) + 12, vR, sKC), ld4(KV_(0) + 4, vV, sKC), ld4(KV_(0) + 8, vV, sKC, 672),
          ld4(KV_(1), vK, sT1), ld2(KV_(1) + 12, vR, sT1), 's_waitcnt vmcnt(0)', 's_branch L_PRE_DONE')
        a('L_FLAGWAIT:', f's_lshl_b32 s{sT1}, 1, s{sBLK}')
        self.poll(vFA, vFD, 0, f's{sT1}')
        a('s_branch L_FLAGOK')

    def role_b(self):
        a = self.a
        T = vT
        a('L_B:')
        self.w_addr('b')
        self.stamp(3)
        self.p1_loop('b')
        self.stats_math()
        vHs, vH6 = 226, 227
        a(f'v_bfe_u32 v{T}, v{vL}, 4, 1', f'v_mul_u32_u24 v{T}, 55296, v{T}', f'v_and_b32 v{T + 1}, 15, v{vL}', f'v_lshl_add_u32 v{T}, v{T + 1}, 4, v{T}',
          f'v_lshrrev_b32 v{T + 1}, 5, v{vL}', f'v_lshl_add_u32 v{vHs}, v{T + 1}, 8, v{T}', f'v_lshl_add_u32 v{vH6}, v{T + 1}, 3, v{T}',
          f's_and_b32 s{sT0}, s{sH}, 3', f's_cmp_eq_u32 s{sT0}, 3', f's_cselect_b32 s{sT0}, {OOB}, 1536', f'v_add_u32 v{vH6}, s{sT0}, v{vH6}')
        a(f's_lshl_b32 s{sT1}, s{sB}, 2', f's_add_u32 s{sT1}, s{sT1}, s{sKQ}', f's_mul_i32 s{sT2}, s{sT1}, {4 * 55296}',
          f's_lshl_b32 s{sT3}, s{sG0}, 8', f's_add_u32 s{sT2}, s{sT2}, s{sT3}', f's_add_u32 s{sT2}, s{sT2}, {H_OFF}',
          f's_lshl_b32 s{sT1}, s{sT1}, 8', f's_lshl_b32 s{sT3}, s{sH}, 3', f's_add_u32 s{sT1}, s{sT1}, s{sT3}', f's_add_u32 s{sKN}, s{sT1}, {FH}')
        for tu in range(2):
            r = vAW1 + 2 * tu
            A0, A1 = ACC(tu, 0), ACC(tu, 1)
            a(self.fold(tu, 0, 0, 16, r), self.fold(tu, 1, 0, 12, r), self.cvt(A0, A0, 8), self.cvt(A1, A1, 6))
            a([f'v_pk_max_i16 v{x}, v{x}, 0' for x in list(range(A0, A0 + 8)) + list(range(A1, A1 + 6))])
            for i, d in enumerate((A0, A0 + 4, A1)):
                a(f'buffer_store_dwordx4 {v(d, 4)}, v{vHs}, s[{sWS}:{sWS + 3}], s{sT2} offen offset:{512 * i} sc1')
            a(f'buffer_store_dwordx2 {v(A1 + 4, 2)}, v{vH6}, s[{sWS}:{sWS + 3}], s{sT2} offen sc1')
            if tu == 0:
                a(f's_add_u32 s{sT2}, s{sT2}, {2 * 55296}')
        a('s_waitcnt lgkmcnt(0)', 's_barrier')
        self.stamp(5)
        YA = lambda rt, ct: 2 + 20 * rt + 4 * ct
        HS = lambda u: 82 + 16 * u
        WF = lambda ct: 162 + 4 * ct
        vHr, vDm, vAWr, vYA, vOut, vXR, vFA, vFD = 182, 186, 191, 192, 196, 198, 208, 210
        a(f's_lshr_b32 s{sT4}, s{sH}, 3', f's_and_b32 s{sT5}, s{sH}, 7')
        a(f'v_lshlrev_b32 v{T}, 4, v{vL}')
        for j in range(4):
            a(f's_add_u32 s{sT0}, s{sKQ}, {j + 1}', f's_and_b32 s{sT0}, s{sT0}, 3', f's_mul_i32 s{sT1}, s{sT0}, 55296', f'v_add_u32 v{vHr + j}, s{sT1}, v{T}',
              f's_mul_i32 s{sT1}, s{sT0}, {RING}', f'v_add_u32 v{vYA + j}, s{sT1}, v{T}')
        for i in range(5):
            a(f'v_add_u32 v{T}, {64 * i}, v{vL}', f'v_mul_u32_u24 v{T + 1}, 6554, v{T}', f'v_lshrrev_b32 v{T + 1}, 16, v{T + 1}',
              f'v_mul_u32_u24 v{T + 2}, 10, v{T + 1}', f'v_sub_u32 v{T}, v{T}, v{T + 2}',
              f'v_and_b32 v{T + 2}, 0x13, v{T + 1}', f'v_bfe_u32 v{T + 3}, v{T + 1}, 2, 1', f'v_lshl_add_u32 v{T + 2}, v{T + 3}, 3, v{T + 2}',
              f'v_bfe_u32 v{T + 3}, v{T + 1}, 3, 1', f'v_lshl_add_u32 v{T + 2}, v{T + 3}, 2, v{T + 2}',
              f'v_mul_u32_u24 v{T + 2}, 1280, v{T + 2}', f'v_lshl_add_u32 v{vDm + i}, v{T}, 4, v{T + 2}')
            if 0 < i < 4:
                a(f'v_subrev_u32 v{vDm + i}, {1024 * i}, v{vDm + i}')
        a(f'v_lshrrev_b32 v{T}, 5, v{vL}', f'v_bfe_u32 v{T + 1}, v{vL}, 4, 1', f'v_lshlrev_b32 v{T}, 4, v{T}', f'v_lshl_add_u32 v{T}, v{T + 1}, 2, v{T}',
          f'v_bfe_u32 v{T + 1}, v{vL}, 2, 2', f'v_add_u32 v{T}, v{T}, v{T + 1}', f'v_mul_u32_u24 v{T}, 160, v{T}', f'v_and_b32 v{T + 1}, 3, v{vL}',
          f'v_lshl_add_u32 v{vXR + 10 - 1 + 0}, v{T + 1}, 3, v{T}')
        vLane = vXR + 9
        a(f's_mul_i32 s{sM0X}, s{sKQ}, {RING}', f'v_add_u32 v{vAWr}, s{sM0X}, v{vLane}', f'v_mov_b32 v{vMSKW}, v{vLane}')
        a(f's_mul_i32 s{sT0}, s{sKQ}, 14', f's_cmp_eq_u32 s{sKQ}, 3', f's_cselect_b32 s{sT0}, 41, s{sT0}',
          f's_cmp_ge_u32 s{sKQ}, 2', f's_cselect_b32 s{sHE}, 13, 14',
          f's_mul_i32 s{sT1}, s{sT5}, 160', f's_mul_i32 s{sDS}, s{sT0}, {32 * 1280}', f's_add_u32 s{sDS}, s{sDS}, s{sT1}',
          f's_mul_i32 s{sKB}, s{sKQ}, {160 * 1280}', f's_add_u32 s{sKB}, s{sKB}, s{sT1}',
          f's_lshl_b32 s{sT1}, s{sB}, 2', f's_add_u32 s{sBLK}, s{sT1}, s{sT4}',
          f's_mul_i32 s{sHS}, s{sBLK}, {4 * 55296}', f's_lshl_b32 s{sT0}, s{sT0}, 10', f's_add_u32 s{sHS}, s{sHS}, s{sT0}', f's_add_u32 s{sHS}, s{sHS}, {H_OFF}')
        a(f's_lshl_b32 s{sT0}, s{sBLK}, 2', f's_add_u32 s{sT0}, s{sT0}, s{sKQ}', f's_mul_i32 s{sT0}, s{sT0}, {16 * 1280}', f's_mul_i32 s{sT1}, s{sT5}, 160',
          f's_add_u32 s{sT0}, s{sT0}, s{sT1}', f'v_and_b32 v{T}, 15, v{vL}', f'v_mul_u32_u24 v{T}, 1280, v{T}', f'v_lshrrev_b32 v{T + 1}, 4, v{vL}',
          f'v_lshl_add_u32 v{T}, v{T + 1}, 3, v{T}', f'v_add_u32 v{vOut}, s{sT0}, v{T}')
        a(f's_lshl_b32 s{sT0}, s{sBLK}, 8', f's_add_u32 s{sT0}, s{sT0}, {FH}', f'v_and_b32 v{vFA}, 31, v{vL}', f'v_lshl_add_u32 v{vFA}, v{vFA}, 3, s{sT0}')
        a([f'v_mov_b32 v{r}, 0' for r in range(YA(0, 0), YA(0, 0) + 80)])
        a('s_waitcnt vmcnt(0)')
        self.post(sKN, T)

        def wdma(u):
            l = [f's_add_u32 m0, s{sM0X}, {5120 * u}', 's_nop 0'] if not isinstance(u, str) else [f's_add_u32 m0, s{sM0X}, {u}', 's_nop 0']
            l += [f'buffer_load_dwordx4 v{vDm + i}, s[{sW2}:{sW2 + 3}], s{sDS} offen offset:{1024 * i} lds' for i in range(4)]
            l += ['s_add_u32 m0, m0, 4096', f's_add_u32 s{sT3}, s{sDS}, 0', f'buffer_load_dwordx4 v{vDm + 4}, s[{sW2}:{sW2 + 3}], s{sT3} offen lds',
                  f's_add_u32 s{sDS}, s{sDS}, {32 * 1280}']
            return l

        def hld(u):
            return [f'buffer_load_dwordx4 {v(HS(u) + 4 * j, 4)}, v{vHr + j}, s[{sWS}:{sWS + 3}], s{sHS} offen sc1' for j in range(4)] + \
                   [f's_add_u32 s{sHS}, s{sHS}, 1024']
        wrd = lambda u, ct, base=vAWr: [f'ds_read_b64_tr_b16 {v(WF(ct) + 2 * e, 2)}, v{base} offset:{5120 * u + 1280 * e + 32 * ct}' for e in range(2)]
        self.srd(sX, 4, 2621440)
        a([f'buffer_load_dwordx2 {v(vXR + 2 * ct, 2)}, v{vOut}, s[{sX}:{sX + 3}], 0 offen offset:{32 * ct}' for ct in range(5)])
        for u0 in (1, 2):
            if u0 == 1:
                a(f's_cmp_ge_u32 s{sKQ}, 2', 's_cbranch_scc1 L_W2_E2')
            else:
                a('L_W2_E2:')
            for j in range(5):
                a(wdma((u0 + j) % 5))
            self.poll(vFA, vFD, 0, -1)
            for j in range(5):
                a(hld((u0 + j) % 5))
            a('s_waitcnt vmcnt(0)')
            for ct in range(5):
                a(wrd(u0, ct))
            a(f's_branch L_W2_{u0}')
        a('.p2align 3')
        for u in range(5):
            a(f'L_W2_{u}:', 's_waitcnt vmcnt(31)')
            self.stamp(31, dyn=sHE)
            for ct in range(5):
                a('s_waitcnt lgkmcnt(8)')
                a([f'v_mfma_f32_16x16x32_bf16 {v(YA(rt, ct), 4)}, {v(WF(ct), 4)}, {v(HS(u) + 4 * rt, 4)}, {v(YA(rt, ct), 4)}' for rt in range(4)])
                a(wrd((u + 1) % 5, ct))
            a(f's_cmp_eq_u32 s{sHE}, 5', f's_cselect_b32 s{sW2 + 2}, 0, s{sW2 + 2}', f's_cselect_b32 s{sHS}, {OOB}, s{sHS}')
            a(wdma(u), hld(u))
            a(f's_sub_u32 s{sHE}, s{sHE}, 1')
            if u == 4:
                a(f's_cmp_lg_u32 s{sHE}, 0', 's_cbranch_scc1 L_W2_0')
        self.stamp(6)
        a('s_waitcnt vmcnt(0) lgkmcnt(0)')
        for rt in range(3):
            a([f'ds_write_b128 v{vYA + 3}, {v(YA(rt, ct), 4)} offset:{5120 * rt + 1024 * ct}' for ct in range(5)])
        self.softbar(4, T)
        for rt in range(3):
            a([f'ds_read_b128 {v(YA(rt, ct), 4)}, v{vYA + rt} offset:{5120 * (2 - rt) + 1024 * ct}' for ct in range(5)])
        a('s_waitcnt lgkmcnt(0)')
        self.softbar(4, T)
        self.srd(sW2, 8, 640 * 1280)
        a(f's_mov_b32 s{sDS}, s{sKB}')
        for u in range(5):
            a(wdma(u))
        Y0 = YA(0, 0)
        a([f'v_pk_add_f32 {v(Y0 + 2 * i, 2)}, {v(Y0 + 2 * i, 2)}, {v(YA(1, 0) + 2 * i, 2)}' for i in range(10)])
        a([f'v_pk_add_f32 {v(Y0 + 2 * i, 2)}, {v(Y0 + 2 * i, 2)}, {v(YA(2, 0) + 2 * i, 2)}' for i in range(10)])
        a(f'v_add_u32 v{vAWr}, 51200, v{vMSKW}', f'v_lshlrev_b32 v{vHr}, 4, v{vL}', f'v_add_u32 v{vFA}, {FO - FH}, v{vFA}')
        a(f's_lshl_b32 s{sT1}, s{sBLK}, 2', f's_add_u32 s{sT1}, s{sT1}, s{sKQ}', f's_mul_i32 s{sHS}, s{sT1}, 20480', f's_add_u32 s{sHS}, s{sHS}, {O_OFF}')
        F = YA(3, 0)
        a([f'v_pk_add_f32 {v(F + 2 * i, 2)}, {v(F + 2 * i, 2)}, {v(Y0 + 2 * i, 2)}' for i in range(10)])
        for ct in range(5):
            for j in range(2):
                x = vXR + 2 * ct + j
                a(f'v_lshlrev_b32 v{T}, 16, v{x}', f'v_and_b32 v{T + 1}, s{sHI}, v{x}',
                  f'v_pk_add_f32 {v(F + 4 * ct + 2 * j, 2)}, {v(F + 4 * ct + 2 * j, 2)}, {v(T, 2)}')
        a('s_waitcnt vmcnt(0)')
        self.softbar(4, T)
        WG = lambda f: (162 if (f % 10) < 5 else 2) + 4 * (f % 5)
        frd = lambda f: [f'ds_read_b64_tr_b16 {v(WG(f) + 2 * e, 2)}, v{vMSKW if f < 50 else vAWr} offset:{5120 * ((f // 5) % 10) + 1280 * e + 32 * (f % 5)}' for e in range(2)]
        for f in range(7):
            a(frd(f))
        self.stamp(7)
        self.poll(vFA, vFD, 0, -1)
        self.stamp(8)
        for ks in range(20):
            a(f'buffer_load_dwordx4 {v(82 + 4 * ks, 4)}, v{vHr}, s[{sWS}:{sWS + 3}], s{sHS} offen offset:{1024 * (ks & 3)} sc1')
            if ks & 3 == 3:
                a(f's_add_u32 s{sHS}, s{sHS}, 4096')
        a('s_cmp_eq_u32 s2, 0', 's_cbranch_scc0 L_NOEP', f's_cmp_eq_u32 s{sW}, 4', 's_cbranch_scc0 L_NOEP',
          's_waitcnt vmcnt(0)', f's_mov_b32 s{sT1}, {EP_OFF}')
        self.post(sT1, T)
        a('s_waitcnt vmcnt(0)', 'L_NOEP:')
        for f in range(100):
            ks, ct = divmod(f, 5)
            lg = 2 * (min(f + 7, 100) - f - 1)
            a(f's_waitcnt vmcnt({19 - ks}) lgkmcnt({lg})' if ct == 0 else f's_waitcnt lgkmcnt({lg})')
            a(f'v_mfma_f32_16x16x32_bf16 {v(F + 4 * ct, 4)}, {v(WG(f), 4)}, {v(82 + 4 * ks, 4)}, {v(F + 4 * ct, 4)}')
            if f + 7 < 100:
                a(frd(f + 7))
        a('s_nop 7')
        for ct in range(5):
            a(self.cvt(F + 4 * ct, F + 4 * ct, 2))
            a(f'buffer_store_dwordx2 {v(F + 4 * ct, 2)}, v{vOut}, s[{sOUT}:{sOUT + 3}], 0 offen offset:{32 * ct}')
        self.stamp(9)

    def build(self):
        a = self.a
        self.prologue()
        self.role_a()
        self.role_b()
        a('L_FIN:')
        self.dump_stamps()
        a('L_END:', 's_endpgm')
        body = a.text()
        hdr = open('parallel_sum__mha_block__dense_activation_relu__prompt.s.ref').read().split('; Override launch')[0]
        txt = hdr + f'''; @launch grid=(256,1,1) block=(512,1,1) lds={LDS_TOTAL}
.amdgcn_target "amdgcn-amd-amdhsa--gfx950"
.text
.globl {KNAME}
.p2align 8
.type {KNAME},@function
{KNAME}:
''' + body + f'''.section .rodata,"a"
.p2align 6
.amdhsa_kernel {KNAME}
  .amdhsa_next_free_vgpr 256
  .amdhsa_next_free_sgpr 102
  .amdhsa_accum_offset 256
  .amdhsa_group_segment_fixed_size 0
  .amdhsa_kernarg_size 72
  .amdhsa_user_sgpr_count 2
  .amdhsa_user_sgpr_kernarg_segment_ptr 1
  .amdhsa_system_sgpr_workgroup_id_x 1
  .amdhsa_float_denorm_mode_32 3
.end_amdhsa_kernel
'''
        return txt


if __name__ == '__main__':
    import argparse
    ap = argparse.ArgumentParser()
    ap.add_argument('-o', default='k.s')
    ap.add_argument('--stamps', action='store_true')
    ap.add_argument('--fb', action='store_true')
    ap.add_argument('--opt', default='')
    args = ap.parse_args()
    g = Gen(stamps=args.stamps, force_fb=args.fb, opt=[x for x in args.opt.split(',') if x])
    txt = g.build()
    open(args.o, 'w').write(txt)
    pr = check(g.a.lines)
    hard = [p for soft, p in pr if not soft]
    print(f'{len(g.a.lines)} lines; hazards hard {len(hard)} soft {len(pr) - len(hard)}')
    for p in hard[:40]:
        print('  ', p)
```
